```python
import torch

def _softmax(x, axis=-1):
    return torch.softmax(x, dim=axis)
def _gelu(x):
    return torch.nn.functional.gelu(x, approximate="tanh")
def _silu(x):
    return torch.nn.functional.silu(x)
def _sigmoid(x):
    return torch.sigmoid(x)
def _layernorm(x, axis=-1, eps=1e-5):
    m = x.mean(dim=axis, keepdim=True)
    v = x.var(dim=axis, keepdim=True, unbiased=False)
    return (x - m) / torch.sqrt(v + eps)
def _scatter_add(tgt, idx, src, axis=0):
    return tgt.clone().index_add_(axis, idx, src)
def _segment_sum(src, seg, n):
    out = torch.zeros((n,) + src.shape[1:], dtype=src.dtype)
    return out.index_add_(0, seg, src)
def _pad(x, pw):
    flat = tuple(v for pair in reversed(pw) for v in pair)
    return torch.nn.functional.pad(x, flat)

kernel_name = 'gated_mix__ssm_conv_s4d__grouped_kv_mqa__prompt'

def setup_inputs():

    _w = (lambda a: (lambda t: t.to(torch.bfloat16) if t.is_floating_point() else t)(torch.as_tensor(a)))
    def _A_setup():
        Bsz, L, D, N = 1, 2048, 576, 128
        return {
            "u": _w((lambda *s: torch.randn(*s, dtype=torch.bfloat16) * 0.05)(Bsz, L, D)),
            "log_A_real": _w((lambda *s: torch.randn(*s, dtype=torch.bfloat16) * 6.4)(D, N) * 0.5),
            "A_imag": _w((lambda *s: torch.randn(*s, dtype=torch.bfloat16) * 0.05)(D, N) * 3.14),
            "C_real": _w((lambda *s: torch.randn(*s, dtype=torch.bfloat16) * 0.05)(D, N) / N ** 0.5),
            "C_imag": _w((lambda *s: torch.randn(*s, dtype=torch.bfloat16) * 0.05)(D, N) / N ** 0.5),
            "log_dt": _w((lambda *s: torch.randn(*s, dtype=torch.bfloat16) * 0.05)(D) * 0.5 - 4.0),
            "D_skip": _w((lambda *s: torch.randn(*s, dtype=torch.bfloat16) * 0.05)(D)),
        }
    _A_in = _A_setup()

    def _B_setup():
        B, S, D, H = 1, 2048, 576, 32
        Dh = D // H
        return {
            "x": _w((lambda *s: torch.randn(*s, dtype=torch.bfloat16) * 0.05)(B, S, D)),
            "wq": _w((lambda *s: torch.randn(*s, dtype=torch.bfloat16) * 0.8)(D, H * Dh)),
            "wk": _w((lambda *s: torch.randn(*s, dtype=torch.bfloat16) * 0.8)(D, Dh)),
            "wv": _w((lambda *s: torch.randn(*s, dtype=torch.bfloat16) * 0.05)(D, Dh)),
            "wo": _w((lambda *s: torch.randn(*s, dtype=torch.bfloat16) * 0.05)(H * Dh, D)),
        }
    _B_in = _B_setup()

    return {
        "A_u": _A_in["u"],
        "A_log_A_real": _A_in["log_A_real"],
        "A_A_imag": _A_in["A_imag"],
        "A_C_real": _A_in["C_real"],
        "A_C_imag": _A_in["C_imag"],
        "A_log_dt": _A_in["log_dt"],
        "A_D_skip": _A_in["D_skip"],
        "B_x": _B_in["x"],
        "B_wq": _B_in["wq"],
        "B_wk": _B_in["wk"],
        "B_wv": _B_in["wv"],
        "B_wo": _B_in["wo"],
        "gate_w": _w((lambda *s: torch.randn(*s, dtype=torch.bfloat16) * 0.05)(576) * 16.0),
    }

def reference(A_u, A_log_A_real, A_A_imag, A_C_real, A_C_imag, A_log_dt, A_D_skip, B_x, B_wq, B_wk, B_wv, B_wo, gate_w):
    def _A_ref(u, log_A_real, A_imag, C_real, C_imag, log_dt, D_skip):
        L = u.shape[1]
        dt = torch.exp(log_dt)
        A = -torch.exp(log_A_real) + 1j * A_imag
        C = (C_real + 1j * C_imag) * dt[:, None]
        pos = (lambda x, dt: x.to(dt))(torch.arange(L), log_dt.dtype)
        P = torch.exp((A * dt[:, None])[:, :, None] * pos[None, None, :])
        K = 2.0 * torch.einsum("dn,dnl->dl", C, P).real
        L2 = 2 * L
        u_t = (lambda x, *d: x.permute(*d))(u, 0, 2, 1)
        Kf = (lambda x, *a, **k: torch.fft.rfft(x.float(), *a, **k))(K, L2)
        Uf = (lambda x, *a, **k: torch.fft.rfft(x.float(), *a, **k))(u_t, L2)
        y = (lambda x, *a, **k: torch.fft.irfft(x, *a, **k).to(torch.bfloat16))(Uf * Kf[None, :, :], L2)[:, :, :L]
        y = (lambda x, *d: x.permute(*d))(y, 0, 2, 1)
        return y + u * D_skip[None, None, :]

    def _B_ref(x, wq, wk, wv, wo):
        B, S, D = x.shape
        H = 32
        Dh = D // H
        q = (lambda x, *d: x.permute(*d))((x @ wq).reshape(B, S, H, Dh), 0, 2, 1, 3)
        k = x @ wk
        v = x @ wv
        scores = torch.einsum("bhqd,bkd->bhqk", q, k) * (Dh ** -0.5)
        p = _softmax(scores, axis=-1)
        o = torch.einsum("bhqk,bkd->bhqd", p, v)
        return (lambda x, *d: x.permute(*d))(o, 0, 2, 1, 3).reshape(B, S, H * Dh) @ wo

    x = A_u
    g = _sigmoid((x * gate_w).sum(-1, keepdims=True))
    a = _A_ref(x, A_log_A_real, A_A_imag, A_C_real, A_C_imag, A_log_dt, A_D_skip)
    b = _B_ref(x, B_wq, B_wk, B_wv, B_wo)
    return g * a + (1 - g) * b
```

```python
QF_OFF = 0
KV_OFF = 4 << 20
YT_OFF = 5 << 20
O_OFF = 8 << 20
G_OFF = 11 << 20
CHUNK = 19456
KT_OFF = 8192
VV_OFF = 9216
VT = 1216

class Asm:
    def __init__(self):
        self.lines = []
        self.uid = 0
    def __call__(self, s):
        for l in s.strip("\n").split("\n"):
            self.lines.append("  " + l.strip())
    def label(self, l):
        self.lines.append(l + ":")
    def raw(self, s):
        self.lines.append(s)
    def text(self):
        return "\n".join(self.lines) + "\n"
    def newlabel(self, p="L"):
        self.uid += 1
        return f"{p}_{self.uid}"

def vr(b, n):
    return f"v[{b}:{b+n-1}]" if n > 1 else f"v{b}"

def srd(a, d, base, nbytes):
    a(f"s_mov_b32 s{d}, s{base}")
    a(f"s_and_b32 s{d+1}, s{base+1}, 0xffff")
    a(f"s_mov_b32 s{d+2}, {nbytes}")
    a(f"s_mov_b32 s{d+3}, 0x00020000")

def srd_off(a, d, base, off, nbytes):
    a(f"s_add_u32 s{d}, s{base}, {off}")
    a(f"s_addc_u32 s{d+1}, s{base+1}, 0")
    a(f"s_and_b32 s{d+1}, s{d+1}, 0xffff")
    a(f"s_mov_b32 s{d+2}, {nbytes}")
    a(f"s_mov_b32 s{d+3}, 0x00020000")

def f32bits(x):
    import struct
    return "0x%08x" % struct.unpack("<I", struct.pack("<f", x))[0]

def desc(name, nvgpr, nsgpr=102):
    acc = (nvgpr + 3) // 4 * 4
    return f""".p2align 6
.amdhsa_kernel {name}
  .amdhsa_next_free_vgpr {nvgpr}
  .amdhsa_next_free_sgpr {nsgpr}
  .amdhsa_accum_offset {acc}
  .amdhsa_group_segment_fixed_size 0
  .amdhsa_kernarg_size 128
  .amdhsa_user_sgpr_count 2
  .amdhsa_user_sgpr_kernarg_segment_ptr 1
  .amdhsa_system_sgpr_workgroup_id_x 1
.end_amdhsa_kernel
"""

def kernel_head(a, name):
    a.raw(f".globl {name}")
    a.raw(".p2align 8")
    a.raw(f".type {name},@function")
    a.label(name)

def gemm_core(a, gate=False, nsteps=36, depth=3):
    RSTR = 16 if gate else 12
    nset = depth + 1
    per = 9 + (1 if gate else 0)
    def issue(s):
        b = 16 + RSTR * (s % nset) if not gate else 112 + RSTR * (s % nset)
        for t in range(8):
            so = "0" if t == 0 else f"s{60+t}"
            a(f"buffer_load_dword v{b+t}, v4, s[52:55], {so} offen")
        a(f"buffer_load_dwordx4 v[{b+8}:{b+11}], v3, s[48:51], 0 offen offset:{32*s}")
        if gate:
            a(f"buffer_load_dwordx4 v[{b+12}:{b+15}], v9, s[72:75], 0 offen offset:{32*s}")
        a("v_add_u32 v4, s68, v4")
    for r in range(32):
        a(f"v_mov_b32 v{80+r}, 0")
    for s in range(min(depth, nsteps)):
        issue(s)
    for s in range(nsteps):
        if s + depth < nsteps:
            issue(s + depth)
        out = min(depth, nsteps - 1 - s) * per
        a(f"s_waitcnt vmcnt({out})")
        b = 16 + RSTR * (s % nset) if not gate else 112 + RSTR * (s % nset)
        for j in range(4):
            a(f"v_perm_b32 v{64+j}, v{b+2*j+1}, v{b+2*j}, s70")
        for j in range(4):
            a(f"v_perm_b32 v{68+j}, v{b+2*j+1}, v{b+2*j}, s71")
        if gate:
            for j in range(4):
                a(f"v_or_b32 v{64+j}, v{64+j}, v{b+12+j}")
        a("s_nop 1")
        a(f"v_mfma_f32_32x32x16_bf16 v[80:95], v[64:67], v[{b+8}:{b+11}], v[80:95]")
        a(f"v_mfma_f32_32x32x16_bf16 v[96:111], v[68:71], v[{b+8}:{b+11}], v[96:111]")
    a("s_nop 15")
    a("s_nop 3")
```

```python
from common import *
import math

LOG2E = 1.4426950408889634
QSCALE = LOG2E / math.sqrt(18.0)

CP = 0; CS = 4416
UB = 36864
PR = 47104
RV = 47104
TB = 51328
K1_LDS = 52864
ZIDX = 700

def gen_k1(a):
    kernel_head(a, "k1_kernel")
    a("""
    s_cmp_ge_u32 s2, 864
    s_cbranch_scc1 K1_END
    s_load_dwordx16 s[16:31], s[0:1], 0
    s_load_dwordx16 s[32:47], s[0:1], 64
    v_and_b32 v2, 63, v0
    v_lshrrev_b32 v1, 6, v0
    s_nop 0
    v_readfirstlane_b32 s3, v1
    s_waitcnt lgkmcnt(0)
    s_cmp_lt_u32 s2, 576
    s_cbranch_scc1 K1_CONV
    """)
    a("""
    s_sub_u32 s4, s2, 576
    s_lshl_b32 s4, s4, 2
    s_add_u32 s4, s4, s3
    s_mul_i32 s5, s4, 3641
    s_lshr_b32 s5, s5, 16
    s_mul_i32 s6, s5, 18
    s_sub_u32 s6, s4, s6
    """)
    srd(a, 48, 16, 2359296)
    srd(a, 56, 46, 0x10000000)
    a("""
    v_and_b32 v5, 31, v2
    v_lshrrev_b32 v6, 5, v2
    v_and_b32 v7, 15, v5
    v_lshrrev_b32 v8, 4, v5
    s_lshl_b32 s7, s5, 5
    v_add_u32 v3, s7, v5
    s_movk_i32 s8, 1152
    v_mul_lo_u32 v3, v3, s8
    v_lshl_add_u32 v3, v6, 4, v3
    s_mov_b32 s70, 0x05040100
    s_mov_b32 s71, 0x07060302
    s_mov_b32 s69, 0x40000000
    s_cmp_ge_u32 s6, 16
    s_cbranch_scc1 K1_KV
    """)
    srd(a, 52, 32, 663552)
    for t in range(1, 8):
        a(f"s_mov_b32 s{60+t}, {t*1152}")
    a(f"s_mov_b32 s68, {16*1152}")
    a("""
    s_mul_i32 s9, s6, 72
    v_mul_u32_u24 v4, 36, v8
    v_lshl_add_u32 v4, v7, 2, v4
    v_add_u32 v4, s9, v4
    v_mul_u32_u24 v9, 9216, v6
    v_add_u32 v4, v4, v9
    v_mov_b32 v9, s69
    v_cmp_gt_u32 vcc, 9, v7
    s_nop 1
    v_cndmask_b32 v4, v9, v4, vcc
    """)
    gemm_core(a, gate=False)
    a(f"s_mov_b32 s9, {f32bits(QSCALE)}")
    for r in range(32):
        a(f"v_mul_f32 v{80+r}, s9, v{80+r}")
    a("""
    s_lshl_b32 s9, s6, 7
    s_add_u32 s9, s9, s5
    s_lshl_b32 s9, s9, 11
    v_lshlrev_b32 v4, 4, v2
    v_add_u32 v4, s9, v4
    """)
    for g in range(4):
        for r in range(4):
            a(f"v_cvt_pk_bf16_f32 v{64+(g&1)*4+r}, v{80+4*g+r}, v{96+4*g+r}")
        hs, jj = g >> 1, g & 1
        a(f"s_mov_b32 s10, {hs*64*2048}")
        a(f"buffer_store_dwordx4 v[{64+(g&1)*4}:{67+(g&1)*4}], v4, s[56:59], s10 offen offset:{jj*1024}")
        a("s_nop 1")
    a("s_endpgm")

    a.label("K1_KV")
    a("""
    s_cmp_eq_u32 s6, 17
    s_cbranch_scc1 K1_V
    """)
    srd(a, 52, 34, 20736)
    srd(a, 72, 40, 1152)
    for t in range(1, 8):
        a(f"s_mov_b32 s{60+t}, {t*36}")
    a(f"s_mov_b32 s68, {16*36}")
    a("""
    v_lshlrev_b32 v4, 2, v7
    v_mul_u32_u24 v9, 288, v6
    v_add_u32 v4, v4, v9
    v_mov_b32 v10, s69
    v_cmp_gt_u32 vcc, 9, v5
    s_nop 1
    v_cndmask_b32 v4, v10, v4, vcc
    v_lshlrev_b32 v9, 4, v6
    v_cmp_eq_u32 vcc, 16, v5
    s_nop 1
    v_cndmask_b32 v9, v10, v9, vcc
    """)
    gemm_core(a, gate=True)
    a(f"""
    s_lshr_b32 s9, s5, 3
    s_mul_i32 s9, s9, {CHUNK}
    s_add_u32 s9, s9, {KV_OFF}
    s_and_b32 s10, s5, 7
    s_lshl_b32 s11, s10, 10
    s_add_u32 s11, s11, s9
    v_lshlrev_b32 v4, 4, v2
    """)
    for r in range(4):
        a(f"v_cvt_pk_bf16_f32 v{64+r}, v{80+r}, v{96+r}")
    a("v_cvt_pk_bf16_f32 v68, v84, v100")
    a("buffer_store_dwordx4 v[64:67], v4, s[56:59], s11 offen")
    a(f"""
    s_lshl_b32 s11, s10, 7
    s_add_u32 s11, s11, s9
    s_add_u32 s11, s11, {KT_OFF}
    v_lshlrev_b32 v4, 2, v5
    s_mov_b32 exec_lo, -1
    s_mov_b32 exec_hi, 0
    buffer_store_dword v68, v4, s[56:59], s11 offen
    v_cvt_pk_bf16_f32 v70, v88, v88
    v_lshlrev_b32 v70, 16, v70
    v_mul_f32 v70, {f32bits(-LOG2E)}, v70
    v_exp_f32 v70, v70
    s_nop 0
    v_add_f32 v70, 1.0, v70
    v_rcp_f32 v70, v70
    s_nop 0
    v_cvt_pk_bf16_f32 v70, v70, v70
    v_lshlrev_b32 v70, 16, v70
    s_lshl_b32 s11, s5, 7
    s_add_u32 s11, s11, {G_OFF}
    buffer_store_dword v70, v4, s[56:59], s11 offen
    s_endpgm
    """)

    a.label("K1_V")
    srd(a, 52, 36, 20736)
    for t in range(1, 8):
        a(f"s_mov_b32 s{60+t}, {t*36}")
    a(f"s_mov_b32 s68, {16*36}")
    a("""
    v_lshlrev_b32 v4, 1, v5
    v_mul_u32_u24 v9, 288, v6
    v_add_u32 v4, v4, v9
    v_mov_b32 v10, s69
    v_cmp_gt_u32 vcc, 18, v5
    s_nop 1
    v_cndmask_b32 v4, v10, v4, vcc
    """)
    depth, nsteps, nset = 3, 36, 4
    def issue(s):
        b = 16 + 12 * (s % nset)
        for t in range(8):
            so = "0" if t == 0 else f"s{60+t}"
            a(f"buffer_load_ushort v{b+t}, v4, s[52:55], {so} offen")
        a(f"buffer_load_dwordx4 v[{b+8}:{b+11}], v3, s[48:51], 0 offen offset:{32*s}")
        a("v_add_u32 v4, s68, v4")
    for r in range(16):
        a(f"v_mov_b32 v{80+r}, 0")
    for s in range(depth): issue(s)
    for s in range(nsteps):
        if s + depth < nsteps: issue(s + depth)
        a(f"s_waitcnt vmcnt({min(depth, nsteps-1-s)*9})")
        b = 16 + 12 * (s % nset)
        for p in range(4):
            a(f"v_lshl_or_b32 v{64+p}, v{b+2*p+1}, 16, v{b+2*p}")
        a("s_nop 1")
        a(f"v_mfma_f32_32x32x16_bf16 v[80:95], v[{b+8}:{b+11}], v[64:67], v[80:95]")
    a("s_nop 15\ns_nop 3")
    for p in range(8):
        a(f"v_cvt_pk_bf16_f32 v{64+p}, v{80+2*p}, v{81+2*p}")
    a(f"""
    v_mov_b32 v10, 0x3f803f80
    v_cmp_eq_u32 vcc, 18, v5
    s_nop 1
    """)
    for p in range(8):
        a(f"v_cndmask_b32 v{64+p}, v{64+p}, v10, vcc")
    a(f"""
    s_lshr_b32 s9, s5, 3
    s_mul_i32 s9, s9, {CHUNK}
    s_add_u32 s9, s9, {KV_OFF + VV_OFF}
    s_and_b32 s10, s5, 7
    s_mul_i32 s11, s10, {VT}
    s_add_u32 s11, s11, s9
    v_mul_u32_u24 v4, 304, v6
    v_lshl_add_u32 v4, v5, 4, v4
    v_cmp_gt_u32 vcc, 19, v5
    s_and_saveexec_b64 s[12:13], vcc
    buffer_store_dwordx4 v[64:67], v4, s[56:59], s11 offen
    buffer_store_dwordx4 v[68:71], v4, s[56:59], s11 offen offset:608
    s_endpgm
    """)

    a.label("K1_CONV")
    srd(a, 48, 16, 2359296)
    srd(a, 56, 46, 0x10000000)
    for t in range(1, 8):
        a(f"s_mov_b32 s{60+t}, {t*1152}")
    a("""
    s_lshl_b32 s4, s2, 1
    v_mul_u32_u24 v3, 9216, v0
    v_add_u32 v3, s4, v3
    """)
    for t in range(8):
        so = "0" if t == 0 else f"s{60+t}"
        a(f"buffer_load_ushort v{32+t}, v3, s[48:51], {so} offen")
    srd(a, 64, 18, 147456)
    srd(a, 68, 20, 147456)
    srd(a, 72, 22, 147456)
    srd(a, 76, 24, 147456)
    srd(a, 80, 26, 1152)
    a("""
    v_and_b32 v4, 127, v0
    v_lshlrev_b32 v4, 1, v4
    s_lshl_b32 s5, s2, 8
    v_mov_b32 v5, s4
    buffer_load_ushort v20, v4, s[64:67], s5 offen
    buffer_load_ushort v21, v4, s[68:71], s5 offen
    buffer_load_ushort v22, v4, s[72:75], s5 offen
    buffer_load_ushort v23, v4, s[76:79], s5 offen
    buffer_load_ushort v24, v5, s[80:83], 0 offen
    """)
    a(f"""
    v_mov_b32 v28, 0
    v_mov_b32 v29, 0
    v_mov_b32 v30, 0
    v_mov_b32 v31, 0
    v_lshlrev_b32 v6, 4, v0
    ds_write_b128 v6, v[28:31] offset:{UB}
    v_cmp_gt_u32 vcc, 64, v0
    s_and_saveexec_b64 s[12:13], vcc
    ds_write_b128 v6, v[28:31] offset:{UB+4096}
    v_mov_b32 v7, {TB + 2*ZIDX}
    ds_write_b16 v7, v28
    s_mov_b64 exec, s[12:13]
    s_waitcnt vmcnt(0)
    """)
    a(f"""
    v_lshrrev_b32 v6, 2, v0
    v_mul_u32_u24 v6, 80, v6
    v_and_b32 v7, 3, v0
    v_lshl_add_u32 v6, v7, 4, v6
    v_lshl_or_b32 v16, v33, 16, v32
    v_lshl_or_b32 v17, v35, 16, v34
    v_lshl_or_b32 v18, v37, 16, v36
    v_lshl_or_b32 v19, v39, 16, v38
    ds_write_b128 v6, v[16:19] offset:{UB + 64*80}
    """)
    a(f"""
    v_lshlrev_b32 v20, 16, v20
    v_lshlrev_b32 v21, 16, v21
    v_lshlrev_b32 v22, 16, v22
    v_lshlrev_b32 v23, 16, v23
    v_lshlrev_b32 v24, 16, v24
    v_mul_f32 v20, {f32bits(LOG2E)}, v20
    v_mul_f32 v24, {f32bits(LOG2E)}, v24
    v_exp_f32 v20, v20
    v_exp_f32 v24, v24
    s_nop 0
    v_cvt_pk_bf16_f32 v25, v20, v24
    v_lshlrev_b32 v20, 16, v25
    v_and_b32 v24, 0xffff0000, v25
    v_mul_f32 v20, v20, v24
    v_mul_f32 v28, {f32bits(-LOG2E)}, v20
    v_mul_f32 v21, v21, v24
    v_mul_f32 v29, {f32bits(1.0/(2*math.pi))}, v21
    v_mul_f32 v22, v22, v24
    v_add_f32 v30, v22, v22
    v_mul_f32 v23, v23, v24
    v_add_f32 v31, v23, v23
    v_and_b32 v4, 127, v0
    v_lshrrev_b32 v5, 5, v4
    v_lshlrev_b32 v4, 4, v4
    v_lshl_add_u32 v4, v5, 4, v4
    v_cmp_gt_u32 vcc, 128, v0
    s_and_saveexec_b64 s[12:13], vcc
    ds_write_b128 v4, v[28:31] offset:{PR}
    s_mov_b64 exec, s[12:13]
    s_waitcnt lgkmcnt(0)
    s_barrier
    """)
    a(f"""
    v_and_b32 v4, 15, v2
    v_lshrrev_b32 v5, 4, v2
    s_cmp_eq_u32 s3, 0
    s_cselect_b32 s6, 0, 8
    v_add_u32 v6, s6, v4
    v_lshlrev_b32 v6, 4, v6
    v_lshlrev_b32 v6, s3, v6
    v_cvt_f32_u32 v6, v6
    v_lshlrev_b32 v7, s3, v4
    v_cvt_f32_u32 v7, v7
    v_mul_u32_u24 v8, 528, v5
    v_mov_b32 v40, 0
    v_mov_b32 v41, 0
    v_mov_b32 v42, 0
    v_mov_b32 v43, 0
    """)
    def kstep(st, pb, tb):
        P0, P1, P2, P3 = pb, pb+1, pb+2, pb+3
        t = tb
        a(f"""
        v_mul_f32 v{t}, v{P0}, v6
        v_mul_f32 v{t+1}, v{P1}, v6
        v_mul_f32 v{t+2}, v{P0}, v7
        v_mul_f32 v{t+3}, v{P1}, v7
        v_exp_f32 v{t}, v{t}
        v_fract_f32 v{t+1}, v{t+1}
        v_exp_f32 v{t+2}, v{t+2}
        v_fract_f32 v{t+3}, v{t+3}
        v_cos_f32 v{t+4}, v{t+1}
        v_sin_f32 v{t+5}, v{t+1}
        v_cos_f32 v{t+6}, v{t+3}
        v_sin_f32 v{t+7}, v{t+3}
        s_nop 0
        v_mul_f32 v{t+4}, v{t}, v{t+4}
        v_mul_f32 v{t+5}, v{t}, v{t+5}
        v_mul_f32 v{t+6}, v{t+2}, v{t+6}
        v_mul_f32 v{t+7}, v{t+2}, v{t+7}
        v_mul_f32 v{t+8}, v{P2}, v{t+4}
        v_mul_f32 v{t+9}, v{P2}, v{t+5}
        v_fma_f32 v{t+8}, -v{P3}, v{t+5}, v{t+8}
        v_fma_f32 v{t+9}, v{P3}, v{t+4}, v{t+9}
        v_sub_f32 v{t+7}, 0, v{t+7}
        s_nop 1
        v_mfma_f32_16x16x4_f32 v[40:43], v{t+8}, v{t+6}, v[40:43]
        v_mfma_f32_16x16x4_f32 v[40:43], v{t+9}, v{t+7}, v[40:43]
        """)
    for st in range(3):
        a(f"ds_read_b128 v[{48+4*(st%4)}:{51+4*(st%4)}], v8 offset:{PR+16*st}")
    for st in range(32):
        if st + 3 < 32:
            a(f"ds_read_b128 v[{48+4*((st+3)%4)}:{51+4*((st+3)%4)}], v8 offset:{PR+16*(st+3)}")
        a(f"s_waitcnt lgkmcnt({min(3, 31-st)})")
        kstep(st, 48 + 4 * (st % 4), 64 + 12 * (st % 2))
    a(f"""
    s_nop 15
    s_lshl_b32 s7, s3, 7
    s_lshl_b32 s8, s6, 4
    s_add_u32 s7, s7, s8
    v_lshl_add_u32 v9, v5, 6, v4
    v_add_u32 v9, s7, v9
    v_lshlrev_b32 v9, 1, v9
    v_cvt_pk_bf16_f32 v44, v40, v41
    v_cvt_pk_bf16_f32 v45, v42, v43
    s_cmp_eq_u32 s3, 0
    s_cbranch_scc1 K1_TW_ALL
    s_cmp_eq_u32 s3, 3
    s_cbranch_scc0 K1_TW_HALF
    s_mov_b32 exec_lo, 0
    s_mov_b32 exec_hi, 0xffff
    ds_write_b16 v9, v44 offset:{TB}
    K1_TW_HALF:
    s_mov_b32 exec_lo, -1
    s_mov_b32 exec_hi, 0
    K1_TW_ALL:
    ds_write_b16 v9, v44 offset:{TB}
    ds_write_b16_d16_hi v9, v44 offset:{TB+32}
    ds_write_b16 v9, v45 offset:{TB+64}
    ds_write_b16_d16_hi v9, v45 offset:{TB+96}
    s_mov_b64 exec, -1
    s_waitcnt lgkmcnt(0)
    s_barrier
    """)
    def d1(cbase):
        a(f"v_add_u32 v10, {cbase}, v0" if cbase else "v_mov_b32 v10, v0")
        a(f"""
        v_lshlrev_b32 v11, 3, v10
        v_sub_u32 v11, 2048, v11
        """)
        for i in range(8):
            a(f"v_subrev_u32 v{16+i}, {i}, v11" if i else "v_mov_b32 v16, v11")
        for i in range(8):
            a(f"v_cvt_f32_i32 v{24+i}, v{16+i}")
        for p in range(4):
            a(f"v_cvt_pk_bf16_f32 v{32+p}, v{24+2*p}, v{25+2*p}")
        for i in range(8):
            p = i // 2
            if i & 1:
                a(f"v_lshrrev_b32 v{24+i}, 16, v{32+p}")
            else:
                a(f"v_and_b32 v{24+i}, 0xffff, v{32+p}")
            a(f"v_subrev_u32 v{24+i}, 17024, v{24+i}")
        for i in range(8):
            a(f"v_cmp_gt_i32 vcc, 128, v{16+i}")
            a("s_nop 1")
            a(f"v_cndmask_b32 v{24+i}, v{24+i}, v{16+i}, vcc")
            a(f"v_cmp_gt_i32 vcc, 0, v{16+i}")
            a("s_nop 1")
            a(f"v_cndmask_b32 v{24+i}, v{24+i}, v12, vcc")
            a(f"v_lshlrev_b32 v{24+i}, 1, v{24+i}")
        for i in range(8):
            a(f"ds_read_u16 v{16+i}, v{24+i} offset:{TB}")
        a(f"""
        v_lshlrev_b32 v13, 4, v10
        s_waitcnt lgkmcnt(0)
        v_lshl_or_b32 v36, v17, 16, v16
        v_lshl_or_b32 v37, v19, 16, v18
        v_lshl_or_b32 v38, v21, 16, v20
        v_lshl_or_b32 v39, v23, 16, v22
        ds_write_b128 v13, v[36:39] offset:{RV}
        """)
    a(f"v_mov_b32 v12, {ZIDX}")
    d1(0)
    a("""
    v_cmp_gt_u32 vcc, 5, v0
    s_and_saveexec_b64 s[12:13], vcc
    s_cbranch_execz K1_D1_SKIP
    """)
    d1(256)
    a("""
    K1_D1_SKIP:
    s_mov_b64 exec, -1
    s_waitcnt lgkmcnt(0)
    s_barrier
    """)
    def d2(cbase):
        a(f"v_add_u32 v10, {cbase}, v0" if cbase else "v_mov_b32 v10, v0")
        a(f"""
        v_lshlrev_b32 v13, 4, v10
        ds_read_b128 v[16:19], v13 offset:{RV-16}
        ds_read_b128 v[20:23], v13 offset:{RV}
        s_waitcnt lgkmcnt(0)
        """)
        for k in range(7):
            a(f"v_mov_b32 v{24+k}, v{17+k}")
        for k in range(7):
            a(f"v_alignbit_b32 v{32+k}, v{17+k}, v{16+k}, 16")
        for k in range(6):
            a(f"v_alignbit_b32 v{40+k}, v{18+k}, v{17+k}, 16")
        for r in range(8):
            if r % 2 == 0:
                st = 4 - r // 2
                base = 16 + st if st % 2 == 0 else 24 + st - 1
            else:
                st = (7 - r) // 2
                base = 32 + st if st % 2 == 0 else 40 + st - 1
            a(f"ds_write_b128 v13, v[{base}:{base+3}] offset:{CP + r*CS}")
    d2(0)
    a("""
    v_cmp_gt_u32 vcc, 5, v0
    s_and_saveexec_b64 s[12:13], vcc
    s_cbranch_execz K1_D2_SKIP
    """)
    d2(256)
    a("""
    K1_D2_SKIP:
    s_mov_b64 exec, -1
    s_waitcnt lgkmcnt(0)
    s_barrier
    """)
    a(f"""
    v_and_b32 v4, 31, v2
    v_lshrrev_b32 v5, 5, v2
    v_and_b32 v6, 7, v4
    v_sub_u32 v7, v4, v6
    v_mul_u32_u24 v8, {CS}, v6
    v_lshlrev_b32 v9, 4, v5
    v_add_u32 v8, v8, v9
    v_lshlrev_b32 v7, 1, v7
    v_sub_u32 v8, v8, v7
    s_lshl_b32 s8, s3, 5
    s_sub_u32 s8, {CP + 4096 - 32*126 + 32*127 - 128*31}, s8
    v_add_u32 v8, s8, v8
    s_lshr_b32 s8, s3, 1
    s_mul_i32 s8, s8, 80
    s_sub_u32 s8, {UB + 2*80}, s8
    s_and_b32 s9, s3, 1
    s_xor_b32 s9, s9, 1
    s_lshl_b32 s9, s9, 5
    s_add_u32 s8, s8, s9
    v_mul_u32_u24 v10, 80, v4
    v_add_u32 v10, v10, v9
    v_add_u32 v10, s8, v10
    """)
    for r in range(32):
        a(f"v_mov_b32 v{64+r}, 0")
    def rd(i, sl):
        b = 16 + 12 * sl
        a(f"ds_read_b128 v[{b}:{b+3}], v8 offset:{128*(31-i)}")
        a(f"ds_read_b128 v[{b+4}:{b+7}], v10 offset:{(32+62-2*i)*80}")
        if i < 16:
            a(f"ds_read_b128 v[{b+8}:{b+11}], v10 offset:{(62-2*i)*80}")
    cnt = lambda i: 3 if i < 16 else 2
    D = 3
    for i in range(D): rd(i, i % 4)
    for i in range(32):
        if i + D < 32: rd(i + D, (i + D) % 4)
        outn = sum(cnt(k) for k in range(i + 1, min(32, i + D + 1)))
        a(f"s_waitcnt lgkmcnt({outn})")
        b = 16 + 12 * (i % 4)
        a(f"v_mfma_f32_32x32x16_bf16 v[80:95], v[{b}:{b+3}], v[{b+4}:{b+7}], v[80:95]")
        if i < 16:
            a(f"v_mfma_f32_32x32x16_bf16 v[64:79], v[{b}:{b+3}], v[{b+8}:{b+11}], v[64:79]")
    a(f"""
    s_nop 15
    s_barrier
    s_mul_i32 s8, s3, 9216
    v_mul_u32_u24 v8, 144, v4
    v_add_u32 v8, s8, v8
    v_add_u32 v8, v8, v9
    """)
    for nt in range(2):
        for g in range(4):
            b = 64 + 16 * nt + 4 * g
            a(f"ds_write_b128 v8, v[{b}:{b+3}] offset:{nt*32*144 + g*32}")
    a(f"""
    s_waitcnt lgkmcnt(0)
    s_barrier
    v_lshrrev_b32 v8, 2, v0
    v_mul_u32_u24 v8, 144, v8
    v_and_b32 v9, 3, v0
    v_lshl_add_u32 v8, v9, 5, v8
    """)
    for w in range(4):
        a(f"ds_read_b128 v[{16+8*w}:{19+8*w}], v8 offset:{w*9216}")
        a(f"ds_read_b128 v[{20+8*w}:{23+8*w}], v8 offset:{w*9216+16}")
    a("s_waitcnt lgkmcnt(0)")
    for k in range(8):
        a(f"v_add_f32 v{16+k}, v{16+k}, v{24+k}")
        a(f"v_add_f32 v{32+k}, v{32+k}, v{40+k}")
    for k in range(8):
        a(f"v_add_f32 v{16+k}, v{16+k}, v{32+k}")
    for p in range(4):
        a(f"v_cvt_pk_bf16_f32 v{48+p}, v{16+2*p}, v{17+2*p}")
    a(f"""
    s_lshl_b32 s8, s2, 12
    s_add_u32 s8, s8, {YT_OFF}
    v_lshlrev_b32 v8, 4, v0
    buffer_store_dwordx4 v[48:51], v8, s[56:59], s8 offen
    K1_END:
    s_endpgm
    """)
```

```python
from common import *

K2_LDS = 8 * CHUNK

QB1 = 4
QB2 = 8
KA1 = 12
KA2 = 20
VA = 28
PP = 44
SS = 52
OO = 84
BK = 100
TMP = 112
AK = 124
AT = 125
AV = 126
MC = 127

THRESH = 0x53800000

def rd_k(a, t, buf):
    c, tin = divmod(t, 8)
    a(f"ds_read_b128 v[{KA1+4*buf}:{KA1+4*buf+3}], v{AK} offset:{c*CHUNK + tin*1024}")
    a(f"ds_read_b32 v{KA2+4*buf}, v{AT} offset:{c*CHUNK + tin*128}")

def rd_v(a, t, buf):
    c, tin = divmod(t, 8)
    a(f"ds_read_b128 v[{VA+8*buf}:{VA+8*buf+3}], v{AV} offset:{c*CHUNK + tin*VT}")
    a(f"ds_read_b128 v[{VA+8*buf+4}:{VA+8*buf+7}], v{AV} offset:{c*CHUNK + tin*VT + 608}")

def qk(a, buf, sb):
    s = SS + 16 * sb
    a(f"v_mfma_f32_32x32x16_bf16 v[{s}:{s+15}], v[{KA1+4*buf}:{KA1+4*buf+3}], v[{QB1}:{QB1+3}], 0")
def qk2(a, buf, sb):
    s = SS + 16 * sb
    a(f"v_mfma_f32_32x32x16_bf16 v[{s}:{s+15}], v[{KA2+4*buf}:{KA2+4*buf+3}], v[{QB2}:{QB2+3}], v[{s}:{s+15}]")

def rowmax(a, s, dst, t2):
    a(f"v_max3_f32 v{dst}, v{s}, v{s+1}, v{s+2}")
    for i in range(3, 15, 2):
        a(f"v_max3_f32 v{dst}, v{dst}, v{s+i}, v{s+i+1}")
    a(f"v_max_f32 v{dst}, v{dst}, v{s+15}")
    a(f"v_mov_b32 v{t2}, v{dst}")
    a("s_nop 1")
    a(f"v_permlane32_swap_b32 v{dst}, v{t2}")
    a("s_nop 1")
    a(f"v_max_f32 v{dst}, v{dst}, v{t2}")

def set_m(a):
    a(f"v_xor_b32 v{TMP+4}, 0x80000000, v{MC}")
    a(f"v_lshrrev_b32 v{TMP+4}, 16, v{TMP+4}")
    a(f"v_cndmask_b32 v{QB2+1}, 0, v{TMP+4}, s[20:21]")

def gen_k2(a):
    kernel_head(a, "k2_kernel")
    a("""
    s_cmp_ge_u32 s2, 256
    s_cbranch_scc1 K2_END
    s_load_dwordx2 s[46:47], s[0:1], 120
    v_and_b32 v2, 63, v0
    v_lshrrev_b32 v1, 6, v0
    s_nop 0
    v_readfirstlane_b32 s3, v1
    s_waitcnt lgkmcnt(0)
    """)
    srd(a, 56, 46, 0x10000000)
    srd_off(a, 60, 46, KV_OFF, 8 * CHUNK)
    a(f"""
    s_lshl_b32 s4, s2, 3
    s_add_u32 s4, s4, s3
    s_lshl_b32 s5, s4, 11
    v_lshlrev_b32 v3, 4, v2
    buffer_load_dwordx4 v[{QB1}:{QB1+3}], v3, s[56:59], s5 offen
    buffer_load_dwordx4 v[{QB2}:{QB2+3}], v3, s[56:59], s5 offen offset:1024
    s_lshl_b32 s6, s3, 10
    """)
    for i in range(19):
        a("s_mov_b32 m0, s6")
        a("s_nop 0")
        a("buffer_load_dwordx4 v3, s[60:63], s6 offen lds")
        a("s_add_u32 s6, s6, 8192")
    a(f"""
    v_and_b32 v{TMP}, 31, v2
    v_lshrrev_b32 v{TMP+1}, 5, v2
    v_lshlrev_b32 v{AK}, 4, v2
    v_lshlrev_b32 v{AT}, 2, v{TMP}
    v_add_u32 v{AT}, {KT_OFF}, v{AT}
    v_min_u32 v{TMP+2}, 18, v{TMP}
    v_lshlrev_b32 v{TMP+2}, 4, v{TMP+2}
    v_mul_u32_u24 v{AV}, 304, v{TMP+1}
    v_add_u32 v{AV}, v{AV}, v{TMP+2}
    v_add_u32 v{AV}, {VV_OFF}, v{AV}
    v_cmp_gt_u32 s[20:21], 32, v2
    """)
    for b in range(2):
        a(f"v_mov_b32 v{KA2+4*b+1}, 0x00003f80")
        a(f"v_mov_b32 v{KA2+4*b+2}, 0")
        a(f"v_mov_b32 v{KA2+4*b+3}, 0")
    for r in range(16):
        a(f"v_mov_b32 v{OO+r}, 0")
    waits = [16, 14, 11, 9, 7, 4, 2, 0]
    a(f"""
    s_waitcnt vmcnt({waits[1]})
    s_barrier
    """)
    rd_k(a, 0, 0)
    a("s_waitcnt lgkmcnt(0)")
    qk(a, 0, 0); qk2(a, 0, 0)
    a("s_nop 15\ns_nop 3")
    rowmax(a, SS, TMP, TMP + 1)
    a(f"""
    v_cvt_pk_bf16_f32 v{TMP}, v{TMP}, v{TMP}
    v_lshlrev_b32 v{MC}, 16, v{TMP}
    """)
    set_m(a)
    a("s_mov_b32 s8, 0")
    a.label("K2_PRIME")
    rd_k(a, 0, 0)
    rd_k(a, 1, 1)
    rd_v(a, 0, 0)
    a("s_waitcnt lgkmcnt(4)")
    qk(a, 0, 0); qk2(a, 0, 0)
    a("s_nop 15\ns_nop 3")
    a.raw(".p2align 6")
    a.label("K2_GROUP")
    for r in range(12):
        a(f"v_mov_b32 v{BK+r}, v{OO+r}")
    for t in range(8):
        cb, nb = t & 1, (t + 1) & 1
        s = SS + 16 * cb
        if t == 5:
            a("s_cmp_ge_u32 s8, 6")
            l = a.newlabel("K2W")
            a(f"s_cbranch_scc1 {l}_skip")
            for g in range(6):
                a(f"s_cmp_eq_u32 s8, {g}")
                a(f"s_cbranch_scc0 {l}_{g}")
                a(f"s_waitcnt vmcnt({waits[g+2]})")
                a.label(f"{l}_{g}")
            a("s_barrier")
            a.label(f"{l}_skip")
        a("s_waitcnt lgkmcnt(2)")
        qk(a, nb, nb)
        for i in range(0, 4): a(f"v_exp_f32 v{s+i}, v{s+i}")
        qk2(a, nb, nb)
        rd_k(a, t + 2, cb)
        for i in range(4, 8): a(f"v_exp_f32 v{s+i}, v{s+i}")
        for p in range(0, 2): a(f"v_cvt_pk_bf16_f32 v{PP+p}, v{s+2*p}, v{s+2*p+1}")
        for i in range(8, 10): a(f"v_exp_f32 v{s+i}, v{s+i}")
        for p in range(2, 4): a(f"v_cvt_pk_bf16_f32 v{PP+p}, v{s+2*p}, v{s+2*p+1}")
        for i in range(10, 12): a(f"v_exp_f32 v{s+i}, v{s+i}")
        a("s_waitcnt lgkmcnt(2)")
        a(f"v_mfma_f32_32x32x16_bf16 v[{OO}:{OO+15}], v[{VA+8*cb}:{VA+8*cb+3}], v[{PP}:{PP+3}], v[{OO}:{OO+15}]")
        for i in range(12, 16): a(f"v_exp_f32 v{s+i}, v{s+i}")
        for p in range(4, 6): a(f"v_cvt_pk_bf16_f32 v{PP+p}, v{s+2*p}, v{s+2*p+1}")
        rd_v(a, t + 1, nb)
        for p in range(6, 8): a(f"v_cvt_pk_bf16_f32 v{PP+p}, v{s+2*p}, v{s+2*p+1}")
        a("s_nop 1")
        a(f"v_mfma_f32_32x32x16_bf16 v[{OO}:{OO+15}], v[{VA+8*cb+4}:{VA+8*cb+7}], v[{PP+4}:{PP+7}], v[{OO}:{OO+15}]")
    a(f"""
    s_nop 15
    v_mov_b32 v{TMP}, {THRESH}
    v_cmp_nle_f32 vcc, v{OO+10}, v{TMP}
    s_nop 3
    s_and_b64 vcc, vcc, s[20:21]
    s_cbranch_vccnz K2_SLOW
    K2_NEXT:
    v_add_u32 v{AK}, {CHUNK}, v{AK}
    v_add_u32 v{AT}, {CHUNK}, v{AT}
    v_add_u32 v{AV}, {CHUNK}, v{AV}
    s_add_u32 s8, s8, 1
    s_cmp_lt_u32 s8, 8
    s_cbranch_scc1 K2_GROUP
    """)
    a(f"""
    s_waitcnt lgkmcnt(0)
    v_mov_b32 v{TMP}, v{OO+10}
    v_mov_b32 v{TMP+1}, v{OO+10}
    s_nop 1
    v_permlane32_swap_b32 v{TMP+1}, v{TMP}
    s_nop 1
    v_rcp_f32 v{TMP}, v{TMP+1}
    s_nop 0
    """)
    for r in range(12):
        a(f"v_mul_f32 v{OO+r}, v{OO+r}, v{TMP}")
    for p in range(6):
        a(f"v_cvt_pk_bf16_f32 v{PP+p}, v{OO+2*p}, v{OO+2*p+1}")
    a(f"""
    s_lshr_b32 s9, s4, 6
    s_and_b32 s10, s4, 63
    s_mul_i32 s9, s9, 36
    s_mul_i32 s10, s10, {32*1152}
    s_add_u32 s9, s9, s10
    s_add_u32 s9, s9, {O_OFF}
    v_and_b32 v{TMP+2}, 31, v2
    v_lshrrev_b32 v{TMP+3}, 5, v2
    v_mul_u32_u24 v{TMP+2}, 1152, v{TMP+2}
    v_lshl_add_u32 v{TMP+2}, v{TMP+3}, 3, v{TMP+2}
    buffer_store_dwordx2 v[{PP}:{PP+1}], v{TMP+2}, s[56:59], s9 offen
    buffer_store_dwordx2 v[{PP+2}:{PP+3}], v{TMP+2}, s[56:59], s9 offen offset:16
    s_mov_b64 exec, s[20:21]
    buffer_store_dword v{PP+4}, v{TMP+2}, s[56:59], s9 offen offset:32
    K2_END:
    s_endpgm
    """)
    a.label("K2_SLOW")
    a("s_waitcnt lgkmcnt(0)")
    for r in range(12):
        a(f"v_mov_b32 v{OO+r}, v{BK+r}")
    for r in range(12, 16):
        a(f"v_mov_b32 v{OO+r}, 0")
    for t in range(8):
        s = SS
        rd_k(a, t, 0)
        rd_v(a, t, 0)
        a("s_waitcnt lgkmcnt(0)")
        qk(a, 0, 0); qk2(a, 0, 0)
        a("s_nop 15\ns_nop 3")
        rowmax(a, s, TMP, TMP + 1)
        a(f"""
        v_max_f32 v{TMP}, 0, v{TMP}
        v_add_f32 v{TMP}, v{TMP}, v{MC}
        v_cvt_pk_bf16_f32 v{TMP}, v{TMP}, v{TMP}
        v_lshlrev_b32 v{TMP}, 16, v{TMP}
        v_sub_f32 v{TMP+1}, v{TMP}, v{MC}
        v_mov_b32 v{MC}, v{TMP}
        v_sub_f32 v{TMP+2}, 0, v{TMP+1}
        v_exp_f32 v{TMP+2}, v{TMP+2}
        """)
        set_m(a)
        for r in range(12):
            a(f"v_mul_f32 v{OO+r}, v{OO+r}, v{TMP+2}")
        for i in range(16):
            a(f"v_sub_f32 v{s+i}, v{s+i}, v{TMP+1}")
        for i in range(16):
            a(f"v_exp_f32 v{s+i}, v{s+i}")
        a("s_nop 0")
        for p in range(8):
            a(f"v_cvt_pk_bf16_f32 v{PP+p}, v{s+2*p}, v{s+2*p+1}")
        a("s_nop 1")
        a(f"v_mfma_f32_32x32x16_bf16 v[{OO}:{OO+15}], v[{VA}:{VA+3}], v[{PP}:{PP+3}], v[{OO}:{OO+15}]")
        a(f"v_mfma_f32_32x32x16_bf16 v[{OO}:{OO+15}], v[{VA+4}:{VA+7}], v[{PP+4}:{PP+7}], v[{OO}:{OO+15}]")
        a("s_nop 15\ns_nop 3")
    a(f"""
    v_add_u32 v{AK}, {CHUNK}, v{AK}
    v_add_u32 v{AT}, {CHUNK}, v{AT}
    v_add_u32 v{AV}, {CHUNK}, v{AV}
    s_add_u32 s8, s8, 1
    s_cmp_lt_u32 s8, 8
    s_cbranch_scc1 K2_PRIME
    v_subrev_u32 v{AK}, {CHUNK}, v{AK}
    s_sub_u32 s8, s8, 1
    s_branch K2_NEXT
    """)
```

```python
from common import *

def bfr_pair(a, x0, x1, t):
    a(f"v_cvt_pk_bf16_f32 v{t}, v{x0}, v{x1}")
    a(f"v_lshlrev_b32 v{x0}, 16, v{t}")
    a(f"v_and_b32 v{x1}, 0xffff0000, v{t}")

def gen_k3(a):
    kernel_head(a, "k3_kernel")
    a("""
    s_cmp_ge_u32 s2, 144
    s_cbranch_scc1 K3_END
    s_load_dwordx2 s[16:17], s[0:1], 0
    s_load_dwordx2 s[28:29], s[0:1], 48
    s_load_dwordx2 s[38:39], s[0:1], 88
    s_load_dwordx2 s[42:43], s[0:1], 104
    s_load_dwordx2 s[46:47], s[0:1], 120
    v_and_b32 v2, 63, v0
    v_lshrrev_b32 v1, 6, v0
    s_nop 0
    v_readfirstlane_b32 s3, v1
    s_waitcnt lgkmcnt(0)
    s_lshl_b32 s4, s2, 2
    s_add_u32 s4, s4, s3
    s_mul_i32 s5, s4, 7282
    s_lshr_b32 s5, s5, 16
    s_mul_i32 s6, s5, 9
    s_sub_u32 s6, s4, s6
    """)
    srd_off(a, 48, 46, O_OFF, 2359296)
    srd(a, 52, 38, 663552)
    srd(a, 56, 46, 0x10000000)
    srd(a, 72, 16, 2359296)
    srd(a, 76, 28, 1152)
    srd(a, 80, 42, 2359296)
    for t in range(1, 8):
        a(f"s_mov_b32 s{60+t}, {t*1152}")
    a(f"s_mov_b32 s68, {16*1152}")
    a(f"""
    s_mov_b32 s70, 0x05040100
    s_mov_b32 s71, 0x07060302
    v_and_b32 v5, 31, v2
    v_lshrrev_b32 v6, 5, v2
    s_lshl_b32 s7, s5, 5
    v_add_u32 v7, s7, v5
    s_movk_i32 s8, 1152
    v_mul_lo_u32 v8, v7, s8
    v_lshl_add_u32 v3, v6, 4, v8
    s_lshl_b32 s9, s6, 7
    v_lshlrev_b32 v4, 2, v5
    v_add_u32 v4, s9, v4
    v_mul_u32_u24 v9, 9216, v6
    v_add_u32 v4, v4, v9
    """)
    a(f"""
    v_lshl_add_u32 v10, v6, 4, v8
    v_lshlrev_b32 v11, 4, v6
    v_lshlrev_b32 v12, 2, v7
    s_mov_b32 s10, {G_OFF}
    buffer_load_dword v160, v12, s[56:59], s10 offen
    """)
    for g in range(4):
        a(f"buffer_load_dwordx4 v[{112+4*g}:{115+4*g}], v10, s[72:75], s9 offen offset:{32*g}")
        a(f"buffer_load_dwordx4 v[{128+4*g}:{131+4*g}], v11, s[76:79], s9 offen offset:{32*g}")
    a(f"""
    v_lshlrev_b32 v13, 15, v6
    v_lshl_add_u32 v13, v7, 1, v13
    s_lshl_b32 s11, s6, 18
    s_add_u32 s11, s11, {YT_OFF}
    """)
    for g in range(4):
        for e in range(8):
            a(f"s_add_u32 s12, s11, {(16*g+e)*4096}")
            a(f"buffer_load_ushort v{176+8*g+e}, v13, s[56:59], s12 offen")
    gemm_core(a, gate=False)
    a(f"""
    v_sub_f32 v161, 1.0, v160
    v_cvt_pk_bf16_f32 v161, v161, v161
    v_lshlrev_b32 v161, 16, v161
    """)
    T = 164
    for g in range(4):
        for p in range(4):
            u, dd, y = 112 + 4*g + p, 128 + 4*g + p, 176 + 8*g + 2*p
            e0, e1 = 80 + 4*g + p, 96 + 4*g + p
            a(f"""
            v_lshlrev_b32 v{T}, 16, v{u}
            v_and_b32 v{T+1}, 0xffff0000, v{u}
            v_lshlrev_b32 v{T+2}, 16, v{dd}
            v_and_b32 v{T+3}, 0xffff0000, v{dd}
            v_mul_f32 v{T}, v{T}, v{T+2}
            v_mul_f32 v{T+1}, v{T+1}, v{T+3}
            """)
            bfr_pair(a, T, T+1, T+4)
            a(f"""
            v_lshlrev_b32 v{T+2}, 16, v{y}
            v_lshlrev_b32 v{T+3}, 16, v{y+1}
            v_add_f32 v{T}, v{T}, v{T+2}
            v_add_f32 v{T+1}, v{T+1}, v{T+3}
            """)
            bfr_pair(a, T, T+1, T+4)
            a(f"""
            v_mul_f32 v{T}, v160, v{T}
            v_mul_f32 v{T+1}, v160, v{T+1}
            """)
            bfr_pair(a, T, T+1, T+4)
            bfr_pair(a, e0, e1, T+4)
            a(f"""
            v_mul_f32 v{e0}, v161, v{e0}
            v_mul_f32 v{e1}, v161, v{e1}
            """)
            bfr_pair(a, e0, e1, T+4)
            a(f"""
            v_add_f32 v{T}, v{T}, v{e0}
            v_add_f32 v{T+1}, v{T+1}, v{e1}
            v_cvt_pk_bf16_f32 v{64+4*(g&1)+p}, v{T}, v{T+1}
            """)
        a(f"buffer_store_dwordx4 v[{64+4*(g&1)}:{67+4*(g&1)}], v10, s[80:83], s9 offen offset:{32*g}")
    a("""
    K3_END:
    s_endpgm
    """)
```

```python
import sys
sys.path.insert(0, "gen")
from common import *
from k1 import gen_k1, K1_LDS
from k2 import gen_k2, K2_LDS
from k3 import gen_k3

HEADER = open("gated_mix__ssm_conv_s4d__grouped_kv_mqa__prompt.s.ref").read().split("; Override launch")[0]

def build():
    a = Asm()
    gen_k1(a); gen_k2(a); gen_k3(a)
    txt = HEADER
    txt += f"; @launch kernel=k1_kernel grid=(864,1,1) block=(256,1,1) lds={K1_LDS}\n"
    txt += f"; @launch kernel=k2_kernel grid=(256,1,1) block=(512,1,1) lds={K2_LDS}\n"
    txt += f"; @launch kernel=k3_kernel grid=(144,1,1) block=(256,1,1) lds=0\n"
    txt += '.amdgcn_target "amdgcn-amd-amdhsa--gfx950"\n.text\n'
    txt += a.text()
    txt += '.section .rodata,"a"\n'
    txt += desc("k1_kernel", 176) + desc("k2_kernel", 128) + desc("k3_kernel", 208)
    return txt

if __name__ == "__main__":
    out = sys.argv[1] if len(sys.argv) > 1 else "gated_mix__ssm_conv_s4d__grouped_kv_mqa__prompt.s"
    open(out, "w").write(build())
```

```python
QF_OFF = 0
KV_OFF = 4 << 20
YT_OFF = 5 << 20
O_OFF = 8 << 20
G_OFF = 11 << 20
XF_OFF = 16 << 20
UT_OFF = 19 << 20
WQF_OFF = 22 << 20
WKF_OFF = 24 << 20
WVF_OFF = (24 << 20) + 65536
WOF_OFF = 25 << 20
OF_OFF = 8 << 20
YF_OFF = 5 << 20
CHUNK = 19456
KT_OFF = 8192
VV_OFF = 9216
VT = 1216

class Asm:
    def __init__(self):
        self.lines = []
        self.uid = 0
    def __call__(self, s):
        for l in s.strip("\n").split("\n"):
            self.lines.append("  " + l.strip())
    def label(self, l):
        self.lines.append(l + ":")
    def raw(self, s):
        self.lines.append(s)
    def text(self):
        return "\n".join(self.lines) + "\n"
    def newlabel(self, p="L"):
        self.uid += 1
        return f"{p}_{self.uid}"

def vr(b, n):
    return f"v[{b}:{b+n-1}]" if n > 1 else f"v{b}"

def srd(a, d, base, nbytes):
    a(f"s_mov_b32 s{d}, s{base}")
    a(f"s_and_b32 s{d+1}, s{base+1}, 0xffff")
    a(f"s_mov_b32 s{d+2}, {nbytes}")
    a(f"s_mov_b32 s{d+3}, 0x00020000")

def srd_off(a, d, base, off, nbytes):
    a(f"s_add_u32 s{d}, s{base}, {off}")
    a(f"s_addc_u32 s{d+1}, s{base+1}, 0")
    a(f"s_and_b32 s{d+1}, s{d+1}, 0xffff")
    a(f"s_mov_b32 s{d+2}, {nbytes}")
    a(f"s_mov_b32 s{d+3}, 0x00020000")

def f32bits(x):
    import struct
    return "0x%08x" % struct.unpack("<I", struct.pack("<f", x))[0]

def desc(name, nvgpr, nsgpr=102):
    acc = (nvgpr + 3) // 4 * 4
    return f""".p2align 6
.amdhsa_kernel {name}
  .amdhsa_next_free_vgpr {nvgpr}
  .amdhsa_next_free_sgpr {nsgpr}
  .amdhsa_accum_offset {acc}
  .amdhsa_group_segment_fixed_size 0
  .amdhsa_kernarg_size 128
  .amdhsa_user_sgpr_count 2
  .amdhsa_user_sgpr_kernarg_segment_ptr 1
  .amdhsa_system_sgpr_workgroup_id_x 1
.end_amdhsa_kernel
"""

def kernel_head(a, name):
    a.raw(f".globl {name}")
    a.raw(".p2align 8")
    a.raw(f".type {name},@function")
    a.label(name)

def gemm_core(a, gate=False, nsteps=36, depth=3):
    RSTR = 16 if gate else 12
    nset = depth + 1
    per = 9 + (1 if gate else 0)
    def issue(s):
        b = 16 + RSTR * (s % nset) if not gate else 112 + RSTR * (s % nset)
        for t in range(8):
            so = "0" if t == 0 else f"s{60+t}"
            a(f"buffer_load_dword v{b+t}, v4, s[52:55], {so} offen")
        a(f"buffer_load_dwordx4 v[{b+8}:{b+11}], v3, s[48:51], 0 offen offset:{32*s}")
        if gate:
            a(f"buffer_load_dwordx4 v[{b+12}:{b+15}], v9, s[72:75], 0 offen offset:{32*s}")
        a("v_add_u32 v4, s68, v4")
    for r in range(32):
        a(f"v_mov_b32 v{80+r}, 0")
    for s in range(min(depth, nsteps)):
        issue(s)
    for s in range(nsteps):
        if s + depth < nsteps:
            issue(s + depth)
        out = min(depth, nsteps - 1 - s) * per
        a(f"s_waitcnt vmcnt({out})")
        b = 16 + RSTR * (s % nset) if not gate else 112 + RSTR * (s % nset)
        for j in range(4):
            a(f"v_perm_b32 v{64+j}, v{b+2*j+1}, v{b+2*j}, s70")
        for j in range(4):
            a(f"v_perm_b32 v{68+j}, v{b+2*j+1}, v{b+2*j}, s71")
        if gate:
            for j in range(4):
                a(f"v_or_b32 v{64+j}, v{64+j}, v{b+12+j}")
        a("s_nop 1")
        a(f"v_mfma_f32_32x32x16_bf16 v[80:95], v[64:67], v[{b+8}:{b+11}], v[80:95]")
        a(f"v_mfma_f32_32x32x16_bf16 v[96:111], v[68:71], v[{b+8}:{b+11}], v[96:111]")
    a("s_nop 15")
    a("s_nop 3")
```

```python
from common import *

class VM:
    def __init__(self, a):
        self.a = a; self.ops = []
    def issue(self, tag):
        self.ops.append(tag)
    def wait(self, tag):
        if tag not in self.ops: return
        idx = max(i for i, t in enumerate(self.ops) if t == tag)
        n = len(self.ops) - 1 - idx
        self.a(f"s_waitcnt vmcnt({n})")
        self.ops = self.ops[idx + 1:]

ACC = 16
RING = 80

def gemm_stream(a, vm, NL, NT, modes, D=3, nsteps=36):
    per = (NL + NT) * 4
    assert RING + per * (D + 1) <= 256
    def load(s):
        b = RING + per * (s % (D + 1))
        for i in range(NL):
            a(f"buffer_load_dwordx4 v[{b+4*i}:{b+4*i+3}], v7, s[56:59], s{80+i} offen")
            a(f"s_add_u32 s{80+i}, s{80+i}, 1024")
            vm.issue(("s", s))
        for t in range(NT):
            a(f"buffer_load_dwordx4 v[{b+4*NL+4*t}:{b+4*NL+4*t+3}], v7, s[56:59], s{84+t} offen")
            a(f"s_add_u32 s{84+t}, s{84+t}, 1024")
            vm.issue(("s", s))
    for s in range(D): load(s)
    for r in range(16 * NL * NT):
        a(f"v_mov_b32 v{ACC+r}, 0")
    for s in range(nsteps):
        if s + D < nsteps: load(s + D)
        vm.wait(("s", s))
        b = RING + per * (s % (D + 1))
        for i in range(NL):
            for t in range(NT):
                xb, wb = b + 4 * i, b + 4 * NL + 4 * t
                c = ACC + 16 * (i * NT + t)
                A, B = (f"v[{wb}:{wb+3}]", f"v[{xb}:{xb+3}]") if modes[t] == 'A' else (f"v[{xb}:{xb+3}]", f"v[{wb}:{wb+3}]")
                a(f"v_mfma_f32_32x32x16_bf16 v[{c}:{c+15}], {A}, {B}, v[{c}:{c+15}]")
    a("s_nop 15\ns_nop 3")

def gemm_lds2(a, vm, NT, modes, XDEP=6, nsteps=36, lds_base=0):
    SPS = 12
    STB = SPS * NT * 1024
    XR = 80
    WFB = XR + 4 * (XDEP + 1)
    NST = nsteps // SPS
    def xload(s):
        b = XR + 4 * (s % (XDEP + 1))
        a(f"buffer_load_dwordx4 v[{b}:{b+3}], v7, s[56:59], s80 offen")
        a("s_add_u32 s80, s80, 1024")
        vm.issue(("x", s))
    def dma(stage, i):
        t, q = divmod(i, SPS // 4)
        a(f"s_add_u32 m0, s10, {lds_base + (stage % 2) * STB + t * SPS * 1024 + q * 4096}")
        a(f"s_add_u32 s12, s{84+t}, {(stage * SPS + 4 * q) * 1024}")
        a(f"buffer_load_dwordx4 v7, s[56:59], s12 offen lds")
        vm.issue(("d", stage))
    PPS = SPS * NT // 4
    def wfrag(s):
        st = s // SPS
        for t in range(NT):
            b = WFB + 4 * NT * (s & 1) + 4 * t
            a(f"ds_read_b128 v[{b}:{b+3}], v7 offset:{lds_base + (st % 2) * STB + t * SPS * 1024 + (s % SPS) * 1024}")
    for i in range(PPS): dma(0, i)
    for s in range(XDEP): xload(s)
    for i in range(PPS): dma(1, i)
    for r in range(16 * NT):
        a(f"v_mov_b32 v{ACC+r}, 0")
    vm.wait(("d", 0))
    a("s_barrier")
    wfrag(0)
    for s in range(nsteps):
        st = s // SPS
        if s + 1 < nsteps:
            if s % SPS == SPS - 1:
                vm.wait(("d", st + 1))
                a("s_waitcnt lgkmcnt(0)")
                a("s_barrier")
            wfrag(s + 1)
        if s + XDEP < nsteps: xload(s + XDEP)
        if st >= 1 and st + 1 < NST and (s % SPS) < PPS:
            dma(st + 1, s % SPS)
        vm.wait(("x", s))
        a(f"s_waitcnt lgkmcnt({NT if s + 1 < nsteps else 0})")
        xb = XR + 4 * (s % (XDEP + 1))
        for t in range(NT):
            wb = WFB + 4 * NT * (s & 1) + 4 * t
            c = ACC + 16 * t
            A, B = (f"v[{wb}:{wb+3}]", f"v[{xb}:{xb+3}]") if modes[t] == 'A' else (f"v[{xb}:{xb+3}]", f"v[{wb}:{wb+3}]")
            a(f"v_mfma_f32_32x32x16_bf16 v[{c}:{c+15}], {A}, {B}, v[{c}:{c+15}]")
    a("s_nop 15\ns_nop 3")
```

```python
from common import *
from k1 import gen_kgen, KG_LDS
K0_LDS = KG_LDS
NKG = 576
NX = 64; NU = 144; NW = 52

def gen_k0(a):
    kernel_head(a, "k0_kernel")
    a(f"""
    s_cmp_ge_u32 s2, {NKG+NX+NU+NW}
    s_cbranch_scc1 K0_END
    s_load_dwordx16 s[16:31], s[0:1], 0
    s_load_dwordx8 s[32:39], s[0:1], 64
    s_load_dwordx2 s[40:41], s[0:1], 96
    s_load_dwordx2 s[46:47], s[0:1], 120
    v_and_b32 v2, 63, v0
    v_lshrrev_b32 v1, 6, v0
    s_nop 0
    v_readfirstlane_b32 s3, v1
    v_and_b32 v5, 31, v2
    v_lshrrev_b32 v6, 5, v2
    v_lshlrev_b32 v7, 4, v2
    s_waitcnt lgkmcnt(0)
    """)
    srd(a, 48, 16, 2359296)
    srd(a, 56, 46, 0x10000000)
    a(f"""
    s_cmp_lt_u32 s2, {NKG}
    s_cbranch_scc1 K0_KG
    s_sub_u32 s2, s2, {NKG}
    s_cmp_ge_u32 s2, {NU}
    s_cbranch_scc1 K0_XW
    """)
    a(f"""
    s_mul_i32 s4, s2, 7282
    s_lshr_b32 s4, s4, 16
    s_mul_i32 s6, s4, 9
    s_sub_u32 s6, s2, s6
    v_lshrrev_b32 v8, 3, v2
    v_mul_u32_u24 v8, 1152, v8
    v_and_b32 v9, 7, v2
    v_lshl_add_u32 v8, v9, 4, v8
    s_mul_i32 s7, s4, {128*1152}
    s_lshl_b32 s8, s6, 7
    s_add_u32 s7, s7, s8
    s_mul_i32 s8, s3, {32*1152}
    s_add_u32 s7, s7, s8
    s_lshl_b32 s9, s3, 12
    """)
    for i in range(4):
        a(f"s_add_u32 m0, s9, {i*1024}")
        a(f"s_add_u32 s10, s7, {i*8*1152}")
        a(f"buffer_load_dwordx4 v8, s[48:51], s10 offen lds")
    a(f"""
    v_bfe_u32 v10, v2, 2, 2
    v_lshlrev_b32 v10, 7, v10
    v_lshrrev_b32 v11, 4, v2
    v_lshl_add_u32 v10, v11, 5, v10
    v_and_b32 v11, 3, v2
    v_lshl_add_u32 v10, v11, 3, v10
    v_add_u32 v10, s9, v10
    v_lshlrev_b32 v12, 12, v2
    s_lshl_b32 s10, s6, 18
    s_lshl_b32 s11, s4, 8
    s_add_u32 s10, s10, s11
    s_lshl_b32 s11, s3, 6
    s_add_u32 s10, s10, s11
    s_add_u32 s10, s10, {UT_OFF}
    s_waitcnt vmcnt(0)
    """)
    for o in range(4):
        a(f"ds_read_b64_tr_b16 v[{16+4*o}:{17+4*o}], v10 offset:{o*1024}")
        a(f"ds_read_b64_tr_b16 v[{18+4*o}:{19+4*o}], v10 offset:{o*1024+512}")
    for o in range(4):
        a(f"s_waitcnt lgkmcnt({6-2*o})")
        a(f"buffer_store_dwordx4 v[{16+4*o}:{19+4*o}], v12, s[56:59], s10 offen offset:{16*o}")
    a("s_endpgm")
    a.label("K0_XW")
    a(f"""
    s_sub_u32 s2, s2, {NU}
    s_cmp_ge_u32 s2, {NX}
    s_cbranch_scc1 K0_W
    """)
    a(f"""
    s_and_b32 s4, s2, 7
    s_lshl_b32 s4, s4, 3
    s_lshr_b32 s2, s2, 3
    s_add_u32 s2, s2, s4
    s_lshl_b32 s4, s2, 5
    v_add_u32 v8, s4, v5
    s_movk_i32 s5, 1152
    v_mul_lo_u32 v8, v8, s5
    v_lshl_add_u32 v8, v6, 4, v8
    s_mul_i32 s6, s3, {9*32}
    s_mul_i32 s7, s2, 36864
    s_mul_i32 s8, s3, {9*1024}
    s_add_u32 s7, s7, s8
    s_add_u32 s7, s7, {XF_OFF}
    """)
    for i in range(9):
        a(f"buffer_load_dwordx4 v[{16+4*i}:{19+4*i}], v8, s[48:51], s6 offen offset:{32*i}")
    for i in range(9):
        a(f"s_waitcnt vmcnt({8})")
        a(f"s_add_u32 s9, s7, {i*1024}")
        a(f"buffer_store_dwordx4 v[{16+4*i}:{19+4*i}], v7, s[56:59], s9 offen")
    a("s_endpgm")
    a.label("K0_W")
    a(f"""
    s_sub_u32 s2, s2, {NX}
    s_mov_b32 s60, 1152
    s_mul_i32 s61, s2, 36
    s_mov_b32 s62, {WQF_OFF}
    s_mul_i32 s63, s2, 36864
    s_add_u32 s62, s62, s63
    s_mov_b32 s64, s32
    s_mov_b32 s65, s33
    s_mov_b32 s66, 663552
    s_cmp_lt_u32 s2, 32
    s_cbranch_scc1 K0_WGO
    s_mov_b32 s60, 36
    s_mov_b32 s61, 0
    s_mov_b32 s62, {WKF_OFF}
    s_mov_b32 s64, s34
    s_mov_b32 s65, s35
    s_mov_b32 s66, 20736
    s_cmp_eq_u32 s2, 32
    s_cbranch_scc1 K0_WGO
    s_mov_b32 s62, {WVF_OFF}
    s_mov_b32 s64, s36
    s_mov_b32 s65, s37
    s_cmp_eq_u32 s2, 33
    s_cbranch_scc1 K0_WGO
    s_sub_u32 s67, s2, 34
    s_mov_b32 s60, 1152
    s_lshl_b32 s61, s67, 6
    s_mul_i32 s63, s67, 36864
    s_add_u32 s62, s63, {WOF_OFF}
    s_mov_b32 s64, s38
    s_mov_b32 s65, s39
    s_mov_b32 s66, 663552
    K0_WGO:
    s_mov_b32 s52, s64
    s_and_b32 s53, s65, 0xffff
    s_mov_b32 s54, s66
    s_mov_b32 s55, 0x00020000
    """)
    srd(a, 72, 40, 1152)
    a(f"""
    s_lshl_b32 s67, s60, 3
    v_mul_lo_u32 v8, v6, s67
    v_lshl_add_u32 v8, v5, 1, v8
    v_add_u32 v8, s61, v8
    s_mul_i32 s68, s3, 144
    s_mul_i32 s68, s68, s60
    s_mul_i32 s69, s3, {9*1024}
    s_add_u32 s62, s62, s69
    s_mul_i32 s70, s3, {9*32}
    v_lshlrev_b32 v9, 4, v6
    v_cmp_eq_u32 s[76:77], 18, v5
    s_cmp_eq_u32 s2, 32
    s_cselect_b64 s[76:77], s[76:77], 0
    """)
    for half in range(2):
        steps = range(0, 5) if half == 0 else range(5, 9)
        for i in steps:
            b = 16 + 8 * (i % 5)
            for t in range(8):
                a(f"buffer_load_ushort v{b+t}, v8, s[52:55], s68 offen")
                a("s_add_u32 s68, s68, s60")
            a(f"buffer_load_dwordx4 v[{64+4*(i%5)}:{67+4*(i%5)}], v9, s[72:75], s70 offen offset:{32*i}")
            for t in range(8):
                a("s_add_u32 s68, s68, s60")
        a("s_waitcnt vmcnt(0)")
        for i in steps:
            b = 16 + 8 * (i % 5)
            for p in range(4):
                a(f"v_lshl_or_b32 v{b+p}, v{b+2*p+1}, 16, v{b+2*p}")
            for p in range(4):
                a(f"v_cndmask_b32 v{b+p}, v{b+p}, v{64+4*(i%5)+p}, s[76:77]")
            a(f"s_add_u32 s71, s62, {i*1024}")
            a(f"buffer_store_dwordx4 v[{b}:{b+3}], v7, s[56:59], s71 offen")
        a("s_nop 2")
    a("""
    K0_END:
    s_endpgm
    """)
    a.label("K0_KG")
    gen_kgen(a)
```

```python
from common import *
from gemm import *
import math

LOG2E = 1.4426950408889634
QSCALE = LOG2E / math.sqrt(18.0)

CP = 0; CS = 4416
KG = 0; KGW = 8704; KGR = 272
UB = 36864
RV = 47104
TB = 34816
K1_LDS = 49152
KG_LDS = 36352
ZIDX = 700
RVG = 4224
RVG_OFF = 28 << 20
NCONV = 576; NQ = 256; NKV = 16

def cmul(a, dr, di, ar, ai, br, bi, nbi):
    a(f"v_mul_f32 v{dr}, v{ar}, v{br}")
    a(f"v_mul_f32 v{di}, v{ar}, v{bi}")
    a(f"v_fmac_f32 v{dr}, v{ai}, v{nbi}")
    a(f"v_fmac_f32 v{di}, v{ai}, v{br}")

def cexp(a, dr, di, P0, P1, posreg, t):
    a(f"""
    v_mul_f32 v{t}, {posreg}, v{P0}
    v_mul_f32 v{t+1}, {posreg}, v{P1}
    v_exp_f32 v{t}, v{t}
    v_fract_f32 v{t+1}, v{t+1}
    v_cos_f32 v{dr}, v{t+1}
    v_sin_f32 v{di}, v{t+1}
    s_nop 0
    v_mul_f32 v{dr}, v{t}, v{dr}
    v_mul_f32 v{di}, v{t}, v{di}
    """)

def gen_kgen(a):
    srd(a, 56, 46, 0x10000000)
    srd(a, 68, 18, 147456)
    srd(a, 72, 20, 147456)
    srd(a, 76, 22, 147456)
    srd(a, 80, 24, 147456)
    srd(a, 84, 26, 1152)
    a("""
    s_lshl_b32 s4, s2, 1
    v_lshlrev_b32 v4, 1, v2
    s_lshl_b32 s5, s2, 8
    v_mov_b32 v5, s4
    buffer_load_ushort v24, v5, s[84:87], 0 offen
    buffer_load_ushort v16, v4, s[68:71], s5 offen
    buffer_load_ushort v17, v4, s[72:75], s5 offen
    buffer_load_ushort v18, v4, s[76:79], s5 offen
    buffer_load_ushort v19, v4, s[80:83], s5 offen
    buffer_load_ushort v20, v4, s[68:71], s5 offen offset:128
    buffer_load_ushort v21, v4, s[72:75], s5 offen offset:128
    buffer_load_ushort v22, v4, s[76:79], s5 offen offset:128
    buffer_load_ushort v23, v4, s[80:83], s5 offen offset:128
    """)
    a(f"""
    v_mov_b32 v28, 0
    v_mov_b32 v29, 0
    v_mov_b32 v30, 0
    v_mov_b32 v31, 0
    v_lshlrev_b32 v6, 4, v0
    v_cmp_gt_u32 vcc, 64, v0
    s_and_saveexec_b64 s[12:13], vcc
    v_mov_b32 v7, {TB + 2*ZIDX}
    ds_write_b16 v7, v28
    s_mov_b64 exec, s[12:13]
    s_mov_b32 s8, 1
    s_lshl_b32 s8, s8, s3
    v_cvt_f32_u32 v6, s8
    s_nop 0
    v_readfirstlane_b32 s88, v6
    v_mul_f32 v6, 0x41800000, v6
    s_nop 0
    v_readfirstlane_b32 s89, v6
    v_mul_f32 v6, 0x41000000, v6
    s_cmp_eq_u32 s3, 0
    s_cselect_b32 s6, 0, 8
    v_readfirstlane_b32 s90, v6
    s_nop 3
    s_cselect_b32 s90, 0, s90
    s_mul_i32 s91, s3, {KGW}
    v_lshlrev_b32 v8, 2, v2
    v_add_u32 v8, s91, v8
    v_and_b32 v4, 15, v2
    v_lshrrev_b32 v5, 4, v2
    v_mul_u32_u24 v9, {KGR}, v4
    v_lshl_add_u32 v9, v5, 4, v9
    v_add_u32 v9, s91, v9
    v_mov_b32 v40, 0
    v_mov_b32 v41, 0
    v_mov_b32 v42, 0
    v_mov_b32 v43, 0
    s_waitcnt vmcnt(0)
    v_lshlrev_b32 v24, 16, v24
    v_mul_f32 v24, {f32bits(LOG2E)}, v24
    v_exp_f32 v24, v24
    s_nop 0
    v_cvt_pk_bf16_f32 v24, v24, v24
    v_lshlrev_b32 v24, 16, v24
    """)
    for ps in range(2):
        r0 = 16 + 4 * ps
        P0, P1, P2, P3 = 44, 45, 46, 47
        a(f"""
        v_lshlrev_b32 v{r0}, 16, v{r0}
        v_lshlrev_b32 v{r0+1}, 16, v{r0+1}
        v_lshlrev_b32 v{r0+2}, 16, v{r0+2}
        v_lshlrev_b32 v{r0+3}, 16, v{r0+3}
        v_mul_f32 v{r0}, {f32bits(LOG2E)}, v{r0}
        v_exp_f32 v{r0}, v{r0}
        s_nop 0
        v_cvt_pk_bf16_f32 v{r0}, v{r0}, v{r0}
        v_lshlrev_b32 v{r0}, 16, v{r0}
        v_mul_f32 v{r0}, v{r0}, v24
        v_mul_f32 v{P0}, {f32bits(-LOG2E)}, v{r0}
        v_mul_f32 v{r0+1}, v{r0+1}, v24
        v_mul_f32 v{P1}, {f32bits(1.0/(2*math.pi))}, v{r0+1}
        v_mul_f32 v{r0+2}, v{r0+2}, v24
        v_add_f32 v{P2}, v{r0+2}, v{r0+2}
        v_mul_f32 v{r0+3}, v{r0+3}, v24
        v_add_f32 v{P3}, v{r0+3}, v{r0+3}
        """)
        cexp(a, 48, 49, P0, P1, "s88", 60)
        cexp(a, 51, 52, P0, P1, "s89", 60)
        cexp(a, 54, 55, P0, P1, "s90", 60)
        a(f"""
        v_sub_f32 v50, 0, v49
        v_sub_f32 v53, 0, v52
        v_sub_f32 v58, 0, v{P3}
        """)
        cmul(a, 56, 57, 54, 55, P2, P3, 58)
        if ps == 1:
            a("s_waitcnt lgkmcnt(0)")
        a(f"v_mov_b32 v72, 0x00003f80")
        a(f"ds_write_b32 v8, v72 offset:{16*KGR}")
        a("v_cvt_pk_bf16_f32 v73, v56, v57")
        a(f"ds_write_b32 v8, v73 offset:0")
        fprev, gprev = None, (56, 57)
        for j in range(1, 16):
            fc = (64, 65) if j & 1 else (66, 67)
            gc = (68, 69) if j & 1 else (70, 71)
            if j == 1:
                a(f"v_mov_b32 v64, v48\nv_mov_b32 v65, v49")
            else:
                cmul(a, fc[0], fc[1], fprev[0], fprev[1], 48, 49, 50)
            cmul(a, gc[0], gc[1], gprev[0], gprev[1], 51, 52, 53)
            a(f"v_cvt_pk_bf16_f32 v72, v{fc[0]}, -v{fc[1]}")
            a(f"v_cvt_pk_bf16_f32 v73, v{gc[0]}, v{gc[1]}")
            a(f"ds_write_b32 v8, v72 offset:{(16+j)*KGR}")
            a(f"ds_write_b32 v8, v73 offset:{j*KGR}")
            fprev, gprev = fc, gc
        a("s_waitcnt lgkmcnt(0)")
        for st in range(4):
            a(f"ds_read_b128 v[{76+8*st}:{79+8*st}], v9 offset:{64*st}")
            a(f"ds_read_b128 v[{80+8*st}:{83+8*st}], v9 offset:{16*KGR + 64*st}")
        for st in range(4):
            a(f"s_waitcnt lgkmcnt({6-2*st})")
            a(f"v_mfma_f32_16x16x32_bf16 v[40:43], v[{76+8*st}:{79+8*st}], v[{80+8*st}:{83+8*st}], v[40:43]")
    a(f"""
    s_nop 7
    """)
    a(f"""
    s_nop 4
    s_lshl_b32 s7, s3, 7
    s_lshl_b32 s8, s6, 4
    s_add_u32 s7, s7, s8
    v_lshl_add_u32 v9, v5, 6, v4
    v_add_u32 v9, s7, v9
    v_lshlrev_b32 v9, 1, v9
    v_cvt_pk_bf16_f32 v44, v40, v41
    v_cvt_pk_bf16_f32 v45, v42, v43
    s_cmp_eq_u32 s3, 0
    s_cbranch_scc1 K0_TW_ALL
    s_cmp_eq_u32 s3, 3
    s_cbranch_scc0 K0_TW_HALF
    s_mov_b32 exec_lo, 0
    s_mov_b32 exec_hi, 0xffff
    ds_write_b16 v9, v44 offset:{TB}
    K0_TW_HALF:
    s_mov_b32 exec_lo, -1
    s_mov_b32 exec_hi, 0
    K0_TW_ALL:
    ds_write_b16 v9, v44 offset:{TB}
    ds_write_b16_d16_hi v9, v44 offset:{TB+32}
    ds_write_b16 v9, v45 offset:{TB+64}
    ds_write_b16_d16_hi v9, v45 offset:{TB+96}
    s_mov_b64 exec, -1
    s_waitcnt lgkmcnt(0)
    s_barrier
    """)
    def d1(cbase):
        a(f"v_add_u32 v10, {cbase}, v0" if cbase else "v_mov_b32 v10, v0")
        a(f"""
        v_lshlrev_b32 v11, 3, v10
        v_sub_u32 v11, 2048, v11
        """)
        for i in range(8):
            a(f"v_subrev_u32 v{16+i}, {i}, v11" if i else "v_mov_b32 v16, v11")
        for i in range(8):
            a(f"v_cvt_f32_i32 v{24+i}, v{16+i}")
        for p in range(4):
            a(f"v_cvt_pk_bf16_f32 v{32+p}, v{24+2*p}, v{25+2*p}")
        for i in range(8):
            p = i // 2
            if i & 1:
                a(f"v_lshrrev_b32 v{24+i}, 16, v{32+p}")
            else:
                a(f"v_and_b32 v{24+i}, 0xffff, v{32+p}")
            a(f"v_subrev_u32 v{24+i}, 17024, v{24+i}")
        for i in range(8):
            a(f"v_cmp_gt_i32 s[{92+2*(i&3)}:{93+2*(i&3)}], s100, v{16+i}")
            if (i & 3) == 3:
                for k in range(i - 3, i + 1):
                    a(f"v_cndmask_b32 v{24+k}, v{24+k}, v{16+k}, s[{92+2*(k&3)}:{93+2*(k&3)}]")
        if cbase:
            for i in range(8):
                a(f"v_cmp_gt_i32 vcc, 0, v{16+i}")
                a("s_nop 1")
                a(f"v_cndmask_b32 v{24+i}, v{24+i}, v12, vcc")
        for i in range(8):
            a(f"v_lshlrev_b32 v{24+i}, 1, v{24+i}")
        for i in range(8):
            a(f"ds_read_u16 v{16+i}, v{24+i} offset:{TB}")
        a(f"""
        v_lshlrev_b32 v13, 4, v10
        s_waitcnt lgkmcnt(0)
        v_lshl_or_b32 v36, v17, 16, v16
        v_lshl_or_b32 v37, v19, 16, v18
        v_lshl_or_b32 v38, v21, 16, v20
        v_lshl_or_b32 v39, v23, 16, v22
        buffer_store_dwordx4 v[36:39], v13, s[56:59], s101 offen
        """)
    a(f"v_mov_b32 v12, {ZIDX}")
    a(f"s_mul_i32 s101, s2, {RVG}")
    a(f"s_add_u32 s101, s101, {RVG_OFF}")
    a("s_movk_i32 s100, 128")
    d1(0)
    a("""
    v_cmp_gt_u32 vcc, 5, v0
    s_and_saveexec_b64 s[12:13], vcc
    s_cbranch_execz K0_D1_SKIP
    """)
    d1(256)
    a("""
    K0_D1_SKIP:
    s_endpgm
    """)


def gen_k1(a):
    kernel_head(a, "k1_kernel")
    a(f"""
    s_cmp_ge_u32 s2, {NCONV+NQ+NKV}
    s_cbranch_scc1 K1_END
    s_load_dwordx16 s[16:31], s[0:1], 0
    s_load_dwordx16 s[32:47], s[0:1], 64
    v_and_b32 v2, 63, v0
    v_lshrrev_b32 v1, 6, v0
    s_nop 0
    v_readfirstlane_b32 s3, v1
    s_waitcnt lgkmcnt(0)
    s_cmp_ge_u32 s2, {NQ+NKV}
    s_cbranch_scc1 K1_CONV
    s_sub_u32 s2, s2, {NKV}
    s_cmp_lt_i32 s2, 0
    s_cselect_b32 s8, {NQ+NKV}, 0
    s_add_u32 s2, s2, s8
    """)
    srd(a, 56, 46, 0x10000000)
    a(f"""
    v_and_b32 v5, 31, v2
    v_lshrrev_b32 v6, 5, v2
    v_lshlrev_b32 v7, 4, v2
    s_lshl_b32 s4, s2, 2
    s_add_u32 s4, s4, s3
    s_cmp_lt_u32 s2, {NQ}
    s_cbranch_scc0 K1_KV
    s_and_b32 s7, s2, 7
    s_lshr_b32 s8, s2, 3
    s_lshr_b32 s5, s8, 4
    s_lshl_b32 s7, s7, 1
    s_add_u32 s5, s5, s7
    s_lshl_b32 s5, s5, 2
    s_add_u32 s5, s5, s3
    s_and_b32 s6, s8, 15
    s_mul_i32 s80, s5, 36864
    s_add_u32 s80, s80, {XF_OFF}
    s_lshl_b32 s10, s3, 10
    s_mul_i32 s84, s6, {2*36864}
    s_add_u32 s84, s84, {WQF_OFF}
    s_add_u32 s84, s84, s10
    s_add_u32 s85, s84, 36864
    """)
    vm = VM(a)
    gemm_lds2(a, vm, 2, ['A', 'A'])
    a(f"s_mov_b32 s9, {f32bits(QSCALE)}")
    for c in range(2):
        for r in range(10):
            a(f"v_mul_f32 v{ACC+16*c+r}, s9, v{ACC+16*c+r}")
    a("""
    v_cmp_gt_u32 vcc, 32, v2
    v_mov_b32 v101, 0
    v_mov_b32 v102, 0
    v_mov_b32 v103, 0
    v_mov_b32 v109, 0
    v_mov_b32 v110, 0
    v_mov_b32 v111, 0
    s_lshl_b32 s9, s6, 7
    s_add_u32 s9, s9, s5
    s_lshl_b32 s9, s9, 11
    """)
    for t in range(2):
        c = ACC + 16 * t
        b = 96 + 8 * t
        for p in range(4):
            a(f"v_cvt_pk_bf16_f32 v{b+p}, v{c+2*p}, v{c+2*p+1}")
        a(f"v_cvt_pk_bf16_f32 v{b+4}, v{c+8}, v{c+9}")
        a(f"v_cndmask_b32 v{b+4}, 0, v{b+4}, vcc")
        a(f"s_add_u32 s12, s9, {t*64*2048}")
        a(f"buffer_store_dwordx4 v[{b}:{b+3}], v7, s[56:59], s12 offen")
        a(f"buffer_store_dwordx4 v[{b+4}:{b+7}], v7, s[56:59], s12 offen offset:1024")
    a("s_endpgm")

    a.label("K1_KV")
    a(f"""
    s_sub_u32 s5, s4, {NQ*4}
    s_mul_i32 s80, s5, 36864
    s_add_u32 s80, s80, {XF_OFF}
    s_mov_b32 s84, {WKF_OFF}
    s_mov_b32 s85, {WVF_OFF}
    """)
    vm = VM(a)
    gemm_stream(a, vm, 1, 2, ['A', 'B'], D=3)
    a(f"""
    s_lshr_b32 s9, s5, 3
    s_mul_i32 s9, s9, {CHUNK}
    s_add_u32 s9, s9, {KV_OFF}
    s_and_b32 s10, s5, 7
    s_lshl_b32 s11, s10, 10
    s_add_u32 s11, s11, s9
    """)
    for p in range(4):
        a(f"v_cvt_pk_bf16_f32 v{96+p}, v{ACC+2*p}, v{ACC+2*p+1}")
    a(f"v_cvt_pk_bf16_f32 v100, v{ACC+8}, v{ACC+9}")
    a("buffer_store_dwordx4 v[96:99], v7, s[56:59], s11 offen")
    for p in range(8):
        a(f"v_cvt_pk_bf16_f32 v{104+p}, v{ACC+16+2*p}, v{ACC+16+2*p+1}")
    a(f"""
    v_mov_b32 v10, 0x3f803f80
    v_cmp_eq_u32 vcc, 18, v5
    s_nop 1
    """)
    for p in range(8):
        a(f"v_cndmask_b32 v{104+p}, v{104+p}, v10, vcc")
    a(f"""
    s_mul_i32 s11, s10, {VT}
    s_add_u32 s11, s11, s9
    s_add_u32 s11, s11, {VV_OFF}
    v_mul_u32_u24 v4, 304, v6
    v_lshl_add_u32 v4, v5, 4, v4
    v_cmp_gt_u32 vcc, 19, v5
    s_and_saveexec_b64 s[12:13], vcc
    buffer_store_dwordx4 v[104:107], v4, s[56:59], s11 offen
    buffer_store_dwordx4 v[108:111], v4, s[56:59], s11 offen offset:608
    s_lshl_b32 s11, s10, 7
    s_add_u32 s11, s11, s9
    s_add_u32 s11, s11, {KT_OFF}
    s_mov_b32 exec_lo, -1
    s_mov_b32 exec_hi, 0
    v_lshlrev_b32 v4, 2, v5
    buffer_store_dword v100, v4, s[56:59], s11 offen
    v_cvt_pk_bf16_f32 v120, v{ACC+10}, v{ACC+10}
    v_lshlrev_b32 v120, 16, v120
    v_mul_f32 v120, {f32bits(-LOG2E)}, v120
    v_exp_f32 v120, v120
    s_nop 0
    v_add_f32 v120, 1.0, v120
    v_rcp_f32 v120, v120
    s_nop 0
    v_cvt_pk_bf16_f32 v120, v120, v120
    v_lshlrev_b32 v120, 16, v120
    s_lshl_b32 s11, s5, 7
    s_add_u32 s11, s11, {G_OFF}
    buffer_store_dword v120, v4, s[56:59], s11 offen
    s_endpgm
    """)

    a.label("K1_CONV")
    srd(a, 56, 46, 0x10000000)
    a(f"""
    s_sub_u32 s2, s2, {NQ+NKV}
    v_lshlrev_b32 v3, 4, v0
    s_lshl_b32 s7, s2, 12
    s_add_u32 s7, s7, {UT_OFF}
    buffer_load_dwordx4 v[112:115], v3, s[56:59], s7 offen
    s_mul_i32 s8, s2, {RVG}
    s_add_u32 s8, s8, {RVG_OFF}
    buffer_load_dwordx4 v[20:23], v3, s[56:59], s8 offen
    s_sub_u32 s9, s8, 16
    buffer_load_dwordx4 v[16:19], v3, s[56:59], s9 offen
    buffer_load_dwordx4 v[52:55], v3, s[56:59], s8 offen offset:4080
    s_add_u32 s9, s8, 4096
    buffer_load_dwordx4 v[48:51], v3, s[56:59], s9 offen
    v_mov_b32 v28, 0
    v_mov_b32 v29, 0
    v_mov_b32 v30, 0
    v_mov_b32 v31, 0
    v_lshlrev_b32 v6, 4, v0
    ds_write_b128 v6, v[28:31] offset:{UB}
    v_cmp_gt_u32 vcc, 64, v0
    s_and_saveexec_b64 s[12:13], vcc
    ds_write_b128 v6, v[28:31] offset:{UB+4096}
    s_mov_b64 exec, s[12:13]
    v_lshrrev_b32 v6, 2, v0
    v_mul_u32_u24 v6, 80, v6
    v_and_b32 v7, 3, v0
    v_lshl_add_u32 v6, v7, 4, v6
    s_waitcnt vmcnt(4)
    ds_write_b128 v6, v[112:115] offset:{UB + 64*80}
    s_waitcnt vmcnt(2)
    """)
    def d2(cbase):
        a(f"v_add_u32 v10, {cbase}, v0" if cbase else "v_mov_b32 v10, v0")
        a("v_lshlrev_b32 v13, 4, v10")
        if cbase:
            a("s_waitcnt vmcnt(0)")
            for k in range(4):
                a(f"v_mov_b32 v{16+k}, v{52+k}")
                a(f"v_mov_b32 v{20+k}, v{48+k}")
        for k in range(7):
            a(f"v_mov_b32 v{24+k}, v{17+k}")
        for k in range(7):
            a(f"v_alignbit_b32 v{32+k}, v{17+k}, v{16+k}, 16")
        for k in range(6):
            a(f"v_alignbit_b32 v{40+k}, v{18+k}, v{17+k}, 16")
        for r in range(8):
            if r % 2 == 0:
                st = 4 - r // 2
                base = 16 + st if st % 2 == 0 else 24 + st - 1
            else:
                st = (7 - r) // 2
                base = 32 + st if st % 2 == 0 else 40 + st - 1
            a(f"ds_write_b128 v13, v[{base}:{base+3}] offset:{CP + r*CS}")
    d2(0)
    a("""
    v_cmp_gt_u32 vcc, 5, v0
    s_and_saveexec_b64 s[12:13], vcc
    s_cbranch_execz K1_D2_SKIP
    """)
    d2(256)
    a("""
    K1_D2_SKIP:
    s_mov_b64 exec, -1
    s_waitcnt vmcnt(0) lgkmcnt(0)
    s_barrier
    """)
    a(f"""
    v_and_b32 v4, 31, v2
    v_lshrrev_b32 v5, 5, v2
    v_and_b32 v6, 7, v4
    v_sub_u32 v7, v4, v6
    v_mul_u32_u24 v8, {CS}, v6
    v_lshlrev_b32 v9, 4, v5
    v_add_u32 v8, v8, v9
    v_lshlrev_b32 v7, 1, v7
    v_sub_u32 v8, v8, v7
    s_lshl_b32 s8, s3, 5
    s_sub_u32 s8, {CP + 4096 - 32*126 + 32*127 - 128*31}, s8
    v_add_u32 v8, s8, v8
    s_lshr_b32 s8, s3, 1
    s_mul_i32 s8, s8, 80
    s_sub_u32 s8, {UB + 2*80}, s8
    s_and_b32 s9, s3, 1
    s_xor_b32 s9, s9, 1
    s_lshl_b32 s9, s9, 5
    s_add_u32 s8, s8, s9
    v_mul_u32_u24 v10, 80, v4
    v_add_u32 v10, v10, v9
    v_add_u32 v10, s8, v10
    """)
    for r in range(32):
        a(f"v_mov_b32 v{64+r}, 0")
    def rd(i, sl):
        b = 16 + 12 * sl
        a(f"ds_read_b128 v[{b}:{b+3}], v8 offset:{128*(31-i)}")
        a(f"ds_read_b128 v[{b+4}:{b+7}], v10 offset:{(32+62-2*i)*80}")
        if i < 16:
            a(f"ds_read_b128 v[{b+8}:{b+11}], v10 offset:{(62-2*i)*80}")
    cnt = lambda i: 3 if i < 16 else 2
    D = 3
    for i in range(D): rd(i, i % 4)
    for i in range(32):
        if i + D < 32: rd(i + D, (i + D) % 4)
        outn = sum(cnt(k) for k in range(i + 1, min(32, i + D + 1)))
        a(f"s_waitcnt lgkmcnt({outn})")
        b = 16 + 12 * (i % 4)
        a(f"v_mfma_f32_32x32x16_bf16 v[80:95], v[{b}:{b+3}], v[{b+4}:{b+7}], v[80:95]")
        if i < 16:
            a(f"v_mfma_f32_32x32x16_bf16 v[64:79], v[{b}:{b+3}], v[{b+8}:{b+11}], v[64:79]")
    a(f"""
    s_nop 15
    s_barrier
    s_mul_i32 s8, s3, 9216
    v_mul_u32_u24 v8, 144, v4
    v_add_u32 v8, s8, v8
    v_add_u32 v8, v8, v9
    """)
    for nt in range(2):
        for g in range(4):
            b = 64 + 16 * nt + 4 * g
            a(f"ds_write_b128 v8, v[{b}:{b+3}] offset:{nt*32*144 + g*32}")
    a(f"""
    s_waitcnt lgkmcnt(0)
    s_barrier
    v_lshrrev_b32 v8, 2, v0
    v_mul_u32_u24 v8, 144, v8
    v_and_b32 v9, 3, v0
    v_lshl_add_u32 v8, v9, 5, v8
    """)
    for w in range(4):
        a(f"ds_read_b128 v[{16+8*w}:{19+8*w}], v8 offset:{w*9216}")
        a(f"ds_read_b128 v[{20+8*w}:{23+8*w}], v8 offset:{w*9216+16}")
    a("s_waitcnt lgkmcnt(0)")
    for k in range(8):
        a(f"v_add_f32 v{16+k}, v{16+k}, v{24+k}")
        a(f"v_add_f32 v{32+k}, v{32+k}, v{40+k}")
    for k in range(8):
        a(f"v_add_f32 v{16+k}, v{16+k}, v{32+k}")
    for p in range(4):
        a(f"v_cvt_pk_bf16_f32 v{48+p}, v{16+2*p}, v{17+2*p}")
    a(f"""
    s_lshl_b32 s8, s2, 12
    s_add_u32 s8, s8, {YT_OFF}
    v_lshlrev_b32 v8, 4, v0
    buffer_store_dwordx4 v[48:51], v8, s[56:59], s8 offen
    K1_END:
    s_endpgm
    """)
```

```python
from common import *

K2_LDS = 8 * CHUNK + 1024

QB1 = 4
QB2 = 8
KA1 = 12
KA2 = 20
VA = 28
PP = 44
SS = 52
OO = 84
BK = 100
TMP = 112
AK = 124
AT = 125
AV = 126
MC = 127

THRESH = 0x53800000

def rd_k(a, t, buf):
    c, tin = divmod(t, 8)
    a(f"ds_read_b128 v[{KA1+4*buf}:{KA1+4*buf+3}], v{AK} offset:{c*CHUNK + tin*1024}")
    a(f"ds_read_b32 v{KA2+4*buf}, v{AT} offset:{c*CHUNK + tin*128}")

def rd_v(a, t, buf):
    c, tin = divmod(t, 8)
    a(f"ds_read_b128 v[{VA+8*buf}:{VA+8*buf+3}], v{AV} offset:{c*CHUNK + tin*VT}")
    a(f"ds_read_b128 v[{VA+8*buf+4}:{VA+8*buf+7}], v{AV} offset:{c*CHUNK + tin*VT + 608}")

def qk(a, buf, sb):
    s = SS + 16 * sb
    a(f"v_mfma_f32_32x32x16_bf16 v[{s}:{s+15}], v[{KA1+4*buf}:{KA1+4*buf+3}], v[{QB1}:{QB1+3}], 0")
def qk2(a, buf, sb):
    s = SS + 16 * sb
    a(f"v_mfma_f32_32x32x16_bf16 v[{s}:{s+15}], v[{KA2+4*buf}:{KA2+4*buf+3}], v[{QB2}:{QB2+3}], v[{s}:{s+15}]")

def rowmax(a, s, dst, t2):
    a(f"v_max3_f32 v{dst}, v{s}, v{s+1}, v{s+2}")
    for i in range(3, 15, 2):
        a(f"v_max3_f32 v{dst}, v{dst}, v{s+i}, v{s+i+1}")
    a(f"v_max_f32 v{dst}, v{dst}, v{s+15}")
    a(f"v_mov_b32 v{t2}, v{dst}")
    a("s_nop 1")
    a(f"v_permlane32_swap_b32 v{dst}, v{t2}")
    a("s_nop 1")
    a(f"v_max_f32 v{dst}, v{dst}, v{t2}")

def set_m(a):
    a(f"v_xor_b32 v{TMP+4}, 0x80000000, v{MC}")
    a(f"v_lshrrev_b32 v{TMP+4}, 16, v{TMP+4}")
    a(f"v_cndmask_b32 v{QB2+1}, 0, v{TMP+4}, s[20:21]")

STAMP = False
def stamp(a, i):
    if STAMP:
        a(f"s_memtime s[{80+2*i}:{81+2*i}]")
        a("s_waitcnt lgkmcnt(0)")

def gen_k2(a):
    kernel_head(a, "k2_kernel")
    stamp(a, 0)
    a("""
    s_cmp_ge_u32 s2, 256
    s_cbranch_scc1 K2_END
    s_load_dwordx2 s[46:47], s[0:1], 120
    v_and_b32 v2, 63, v0
    v_lshrrev_b32 v1, 6, v0
    s_nop 0
    v_readfirstlane_b32 s3, v1
    s_waitcnt lgkmcnt(0)
    """)
    srd(a, 56, 46, 0x10000000)
    srd_off(a, 60, 46, KV_OFF, 8 * CHUNK)
    a(f"""
    s_and_b32 s30, s3, 7
    s_lshr_b32 s31, s3, 3
    s_lshr_b32 s4, s2, 3
    s_lshl_b32 s4, s4, 6
    s_and_b32 s5, s2, 7
    s_lshl_b32 s5, s5, 3
    s_add_u32 s4, s4, s5
    s_add_u32 s4, s4, s30
    s_lshl_b32 s5, s4, 11
    v_lshlrev_b32 v3, 4, v2
    buffer_load_dwordx4 v[{QB1}:{QB1+3}], v3, s[56:59], s5 offen
    buffer_load_dwordx4 v[{QB2}:{QB2+3}], v3, s[56:59], s5 offen offset:1024
    """)
    for i in range(10):
        a(f"""
        s_add_u32 s6, s3, {16*i}
        s_mul_i32 s7, s6, 3450
        s_lshr_b32 s7, s7, 16
        s_mul_i32 s9, s7, 19
        s_sub_u32 s9, s6, s9
        s_lshr_b32 s10, s7, 1
        s_and_b32 s7, s7, 1
        s_lshl_b32 s7, s7, 2
        s_add_u32 s7, s7, s10
        s_mul_i32 s7, s7, {CHUNK}
        s_lshl_b32 s9, s9, 10
        s_add_u32 s7, s7, s9
        s_cmp_lt_u32 s6, 152
        s_cselect_b32 s7, s7, {8*CHUNK}
        s_mov_b32 m0, s7
        s_nop 0
        buffer_load_dwordx4 v3, s[60:63], s7 offen lds
        """)
    a(f"""
    v_and_b32 v{TMP}, 31, v2
    v_lshrrev_b32 v{TMP+1}, 5, v2
    v_lshlrev_b32 v{AK}, 4, v2
    v_lshlrev_b32 v{AT}, 2, v{TMP}
    v_add_u32 v{AT}, {KT_OFF}, v{AT}
    v_min_u32 v{TMP+2}, 18, v{TMP}
    v_lshlrev_b32 v{TMP+2}, 4, v{TMP+2}
    v_mul_u32_u24 v{AV}, 304, v{TMP+1}
    v_add_u32 v{AV}, v{AV}, v{TMP+2}
    v_add_u32 v{AV}, {VV_OFF}, v{AV}
    s_mul_i32 s7, s31, {4*CHUNK}
    v_add_u32 v{AK}, s7, v{AK}
    v_add_u32 v{AT}, s7, v{AT}
    v_add_u32 v{AV}, s7, v{AV}
    v_cmp_gt_u32 s[20:21], 32, v2
    """)
    for b in range(2):
        a(f"v_mov_b32 v{KA2+4*b+1}, 0x00003f80")
        a(f"v_mov_b32 v{KA2+4*b+2}, 0")
        a(f"v_mov_b32 v{KA2+4*b+3}, 0")
    for r in range(16):
        a(f"v_mov_b32 v{OO+r}, 0")
    waits = [7, 5, 2, 0]
    a(f"""
    s_waitcnt vmcnt({waits[0]})
    s_barrier
    """)
    stamp(a, 1)
    rd_k(a, 0, 0)
    a("s_waitcnt lgkmcnt(0)")
    qk(a, 0, 0); qk2(a, 0, 0)
    a("s_nop 15\ns_nop 3")
    rowmax(a, SS, TMP, TMP + 1)
    a(f"""
    v_cvt_pk_bf16_f32 v{TMP}, v{TMP}, v{TMP}
    v_lshlrev_b32 v{MC}, 16, v{TMP}
    """)
    set_m(a)
    a("s_mov_b32 s8, 0")
    a.label("K2_PRIME")
    rd_k(a, 0, 0)
    rd_k(a, 1, 1)
    rd_v(a, 0, 0)
    a("s_waitcnt lgkmcnt(4)")
    qk(a, 0, 0); qk2(a, 0, 0)
    a("s_nop 15\ns_nop 3")
    a.raw(".p2align 6")
    a.label("K2_GROUP")
    for r in range(12):
        a(f"v_mov_b32 v{BK+r}, v{OO+r}")
    for t in range(8):
        cb, nb = t & 1, (t + 1) & 1
        s = SS + 16 * cb
        if t == 5:
            a("s_cmp_ge_u32 s8, 3")
            l = a.newlabel("K2W")
            a(f"s_cbranch_scc1 {l}_skip")
            for g in range(3):
                a(f"s_cmp_eq_u32 s8, {g}")
                a(f"s_cbranch_scc0 {l}_{g}")
                a(f"s_waitcnt vmcnt({waits[g+1]})")
                a.label(f"{l}_{g}")
            a("s_barrier")
            a.label(f"{l}_skip")
        a("s_waitcnt lgkmcnt(2)")
        qk(a, nb, nb)
        for i in range(0, 4): a(f"v_exp_f32 v{s+i}, v{s+i}")
        qk2(a, nb, nb)
        rd_k(a, t + 2, cb)
        for i in range(4, 8): a(f"v_exp_f32 v{s+i}, v{s+i}")
        for p in range(0, 2): a(f"v_cvt_pk_bf16_f32 v{PP+p}, v{s+2*p}, v{s+2*p+1}")
        for i in range(8, 10): a(f"v_exp_f32 v{s+i}, v{s+i}")
        for p in range(2, 4): a(f"v_cvt_pk_bf16_f32 v{PP+p}, v{s+2*p}, v{s+2*p+1}")
        for i in range(10, 12): a(f"v_exp_f32 v{s+i}, v{s+i}")
        a("s_waitcnt lgkmcnt(2)")
        a(f"v_mfma_f32_32x32x16_bf16 v[{OO}:{OO+15}], v[{VA+8*cb}:{VA+8*cb+3}], v[{PP}:{PP+3}], v[{OO}:{OO+15}]")
        for i in range(12, 16): a(f"v_exp_f32 v{s+i}, v{s+i}")
        for p in range(4, 6): a(f"v_cvt_pk_bf16_f32 v{PP+p}, v{s+2*p}, v{s+2*p+1}")
        rd_v(a, t + 1, nb)
        for p in range(6, 8): a(f"v_cvt_pk_bf16_f32 v{PP+p}, v{s+2*p}, v{s+2*p+1}")
        a("s_nop 1")
        a(f"v_mfma_f32_32x32x16_bf16 v[{OO}:{OO+15}], v[{VA+8*cb+4}:{VA+8*cb+7}], v[{PP+4}:{PP+7}], v[{OO}:{OO+15}]")
    a(f"""
    s_nop 15
    v_mov_b32 v{TMP}, {THRESH}
    v_cmp_nle_f32 vcc, v{OO+10}, v{TMP}
    s_nop 3
    s_and_b64 vcc, vcc, s[20:21]
    s_cbranch_vccnz K2_SLOW
    K2_NEXT:
    v_add_u32 v{AK}, {CHUNK}, v{AK}
    v_add_u32 v{AT}, {CHUNK}, v{AT}
    v_add_u32 v{AV}, {CHUNK}, v{AV}
    s_add_u32 s8, s8, 1
    s_cmp_lt_u32 s8, 4
    s_cbranch_scc1 K2_GROUP
    """)
    stamp(a, 2)
    if STAMP:
        a(f"""
        s_sub_u32 s82, s82, s80
        s_sub_u32 s84, s84, s80
        v_mov_b32 v{TMP}, s82
        v_mov_b32 v{TMP+1}, s84
        s_lshl_b32 s86, s4, 3
        s_add_u32 s86, s86, {12<<20}
        v_mov_b32 v{TMP+2}, 0
        buffer_store_dwordx2 v[{TMP}:{TMP+1}], v{TMP+2}, s[56:59], s86 offen
        s_nop 2
        """)
    a(f"""
    s_waitcnt lgkmcnt(0)
    s_barrier
    s_mul_i32 s7, s30, {13*256}
    v_lshlrev_b32 v{TMP+6}, 2, v2
    v_add_u32 v{TMP+6}, s7, v{TMP+6}
    s_cmp_eq_u32 s31, 0
    s_cbranch_scc1 K2_MRG0
    """)
    for r in range(12):
        a(f"ds_write_b32 v{TMP+6}, v{OO+r} offset:{r*256}")
    a(f"""
    ds_write_b32 v{TMP+6}, v{MC} offset:{12*256}
    s_waitcnt lgkmcnt(0)
    s_barrier
    s_endpgm
    K2_MRG0:
    s_barrier
    """)
    for r in range(12):
        a(f"ds_read_b32 v{BK+r}, v{TMP+6} offset:{r*256}")
    a(f"""
    ds_read_b32 v{TMP+7}, v{TMP+6} offset:{12*256}
    s_waitcnt lgkmcnt(0)
    v_max_f32 v{TMP+8}, v{MC}, v{TMP+7}
    v_sub_f32 v{TMP+9}, v{MC}, v{TMP+8}
    v_sub_f32 v{TMP+10}, v{TMP+7}, v{TMP+8}
    v_exp_f32 v{TMP+9}, v{TMP+9}
    v_exp_f32 v{TMP+10}, v{TMP+10}
    s_nop 0
    """)
    for r in range(12):
        a(f"v_mul_f32 v{OO+r}, v{OO+r}, v{TMP+9}")
        a(f"v_fmac_f32 v{OO+r}, v{BK+r}, v{TMP+10}")
    a(f"""
    v_mov_b32 v{TMP}, v{OO+10}
    v_mov_b32 v{TMP+1}, v{OO+10}
    s_nop 1
    v_permlane32_swap_b32 v{TMP+1}, v{TMP}
    s_nop 1
    v_rcp_f32 v{TMP}, v{TMP+1}
    s_nop 0
    """)
    for r in range(12):
        a(f"v_mul_f32 v{OO+r}, v{OO+r}, v{TMP}")
    for p in range(6):
        a(f"v_cvt_pk_bf16_f32 v{PP+p}, v{OO+2*p}, v{OO+2*p+1}")
    a(f"""
    s_lshr_b32 s9, s4, 6
    s_and_b32 s10, s4, 63
    s_mul_i32 s9, s9, 18
    s_mul_i32 s10, s10, 36864
    s_add_u32 s10, s10, {OF_OFF}
    v_and_b32 v{TMP+2}, 31, v2
    v_lshlrev_b32 v{TMP+2}, 4, v{TMP+2}
    v_lshrrev_b32 v{TMP+3}, 5, v2
    v_lshlrev_b32 v{TMP+3}, 2, v{TMP+3}
    v_add_u32 v{TMP+3}, s9, v{TMP+3}
    """)
    for j in range(5):
        g, p = j >> 1, j & 1
        a(f"""
        v_add_u32 v{TMP+4}, {8*g+2*p}, v{TMP+3}
        v_lshrrev_b32 v{TMP+5}, 3, v{TMP+4}
        v_lshlrev_b32 v{TMP+5}, 9, v{TMP+5}
        v_and_b32 v{TMP+4}, 7, v{TMP+4}
        v_lshl_add_u32 v{TMP+5}, v{TMP+4}, 1, v{TMP+5}
        v_add_u32 v{TMP+5}, v{TMP+5}, v{TMP+2}
        """)
        if j == 4:
            a("s_mov_b64 exec, s[20:21]")
        a(f"buffer_store_dword v{PP+j}, v{TMP+5}, s[56:59], s10 offen")
    a("""
    K2_END:
    s_endpgm
    """)
    a.label("K2_SLOW")
    a("s_waitcnt lgkmcnt(0)")
    for r in range(12):
        a(f"v_mov_b32 v{OO+r}, v{BK+r}")
    for r in range(12, 16):
        a(f"v_mov_b32 v{OO+r}, 0")
    for t in range(8):
        s = SS
        rd_k(a, t, 0)
        rd_v(a, t, 0)
        a("s_waitcnt lgkmcnt(0)")
        qk(a, 0, 0); qk2(a, 0, 0)
        a("s_nop 15\ns_nop 3")
        rowmax(a, s, TMP, TMP + 1)
        a(f"""
        v_max_f32 v{TMP}, 0, v{TMP}
        v_add_f32 v{TMP}, v{TMP}, v{MC}
        v_cvt_pk_bf16_f32 v{TMP}, v{TMP}, v{TMP}
        v_lshlrev_b32 v{TMP}, 16, v{TMP}
        v_sub_f32 v{TMP+1}, v{TMP}, v{MC}
        v_mov_b32 v{MC}, v{TMP}
        v_sub_f32 v{TMP+2}, 0, v{TMP+1}
        v_exp_f32 v{TMP+2}, v{TMP+2}
        """)
        set_m(a)
        for r in range(12):
            a(f"v_mul_f32 v{OO+r}, v{OO+r}, v{TMP+2}")
        for i in range(16):
            a(f"v_sub_f32 v{s+i}, v{s+i}, v{TMP+1}")
        for i in range(16):
            a(f"v_exp_f32 v{s+i}, v{s+i}")
        a("s_nop 0")
        for p in range(8):
            a(f"v_cvt_pk_bf16_f32 v{PP+p}, v{s+2*p}, v{s+2*p+1}")
        a("s_nop 1")
        a(f"v_mfma_f32_32x32x16_bf16 v[{OO}:{OO+15}], v[{VA}:{VA+3}], v[{PP}:{PP+3}], v[{OO}:{OO+15}]")
        a(f"v_mfma_f32_32x32x16_bf16 v[{OO}:{OO+15}], v[{VA+4}:{VA+7}], v[{PP+4}:{PP+7}], v[{OO}:{OO+15}]")
        a("s_nop 15\ns_nop 3")
    a(f"""
    v_add_u32 v{AK}, {CHUNK}, v{AK}
    v_add_u32 v{AT}, {CHUNK}, v{AT}
    v_add_u32 v{AV}, {CHUNK}, v{AV}
    s_add_u32 s8, s8, 1
    s_cmp_lt_u32 s8, 4
    s_cbranch_scc1 K2_PRIME
    v_subrev_u32 v{AK}, {CHUNK}, v{AK}
    s_sub_u32 s8, s8, 1
    s_branch K2_NEXT
    """)
```

```python
from common import *
from gemm import *

K3_WGS = 144
K3_LDS = 65536
YB = 49152

def gen_k3(a):
    kernel_head(a, "k3_kernel")
    a(f"""
    s_cmp_ge_u32 s2, {K3_WGS}
    s_cbranch_scc1 K3_END
    s_load_dwordx2 s[16:17], s[0:1], 0
    s_load_dwordx2 s[28:29], s[0:1], 48
    s_load_dwordx2 s[42:43], s[0:1], 104
    s_load_dwordx2 s[46:47], s[0:1], 120
    v_and_b32 v2, 63, v0
    v_lshrrev_b32 v1, 6, v0
    s_nop 0
    v_readfirstlane_b32 s3, v1
    s_waitcnt lgkmcnt(0)
    s_lshr_b32 s4, s2, 3
    s_cmp_ge_u32 s4, 9
    s_cselect_b32 s5, 1, 0
    s_cselect_b32 s6, 9, 0
    s_sub_u32 s6, s4, s6
    s_and_b32 s7, s2, 7
    s_lshl_b32 s7, s7, 1
    s_add_u32 s5, s5, s7
    s_lshl_b32 s5, s5, 2
    s_add_u32 s5, s5, s3
    """)
    srd(a, 56, 46, 0x10000000)
    srd(a, 72, 16, 2359296)
    srd(a, 76, 28, 1152)
    srd(a, 88, 42, 2359296)
    a(f"""
    v_and_b32 v5, 31, v2
    v_lshrrev_b32 v6, 5, v2
    v_lshlrev_b32 v7, 4, v2
    s_lshl_b32 s7, s5, 5
    v_add_u32 v8, s7, v5
    s_movk_i32 s8, 1152
    v_mul_lo_u32 v9, v8, s8
    v_lshl_add_u32 v9, v6, 3, v9
    v_lshlrev_b32 v10, 3, v6
    v_lshlrev_b32 v11, 2, v8
    s_lshl_b32 s9, s6, 7
    s_mul_i32 s80, s5, 36864
    s_add_u32 s80, s80, {OF_OFF}
    s_lshl_b32 s10, s3, 10
    s_mul_i32 s84, s6, {2*36864}
    s_add_u32 s84, s84, {WOF_OFF}
    s_add_u32 s84, s84, s10
    s_add_u32 s85, s84, 36864
    s_mov_b32 s13, {G_OFF}
    buffer_load_dword v128, v11, s[56:59], s13 offen
    v_lshrrev_b32 v12, 2, v2
    v_lshlrev_b32 v12, 12, v12
    v_and_b32 v13, 3, v2
    v_lshl_add_u32 v12, v13, 4, v12
    s_lshl_b32 s14, s6, 18
    s_lshl_b32 s11, s5, 6
    s_add_u32 s14, s14, s11
    s_add_u32 s14, s14, {YT_OFF}
    s_lshl_b32 s11, s3, 12
    s_add_u32 s11, s11, {YB}
    """)
    vm = VM(a)
    vm.issue(("e",))
    for i in range(4):
        a(f"s_add_u32 m0, s11, {i*1024}")
        a(f"s_add_u32 s12, s14, {i*16*4096}")
        a(f"buffer_load_dwordx4 v12, s[56:59], s12 offen lds")
        vm.issue(("e",))
    for t in range(2):
        for g in range(4):
            k = 4 * t + g
            a(f"buffer_load_dwordx2 v[{132+2*k}:{133+2*k}], v9, s[72:75], s9 offen offset:{64*t+16*g}")
            a(f"buffer_load_dwordx2 v[{148+2*k}:{149+2*k}], v10, s[76:79], s9 offen offset:{64*t+16*g}")
            for _ in range(2): vm.issue(("e",))
    gemm_loop12(a, 0, 2, ['A', 'A'], 'K3_L')
    a(f"""
    v_lshrrev_b32 v14, 5, v2
    v_lshlrev_b32 v14, 2, v14
    v_bfe_u32 v15, v2, 2, 2
    v_add_u32 v14, v14, v15
    v_lshlrev_b32 v14, 6, v14
    v_bfe_u32 v15, v2, 4, 1
    v_lshl_add_u32 v14, v15, 5, v14
    v_and_b32 v15, 3, v2
    v_lshl_add_u32 v14, v15, 3, v14
    v_add_u32 v14, s11, v14
    """)
    for t in range(2):
        for g in range(4):
            k = 4 * t + g
            a(f"ds_read_b64_tr_b16 v[{164+2*k}:{165+2*k}], v14 offset:{(32*t+8*g)*64}")
    a(f"""
    v_sub_f32 v129, 1.0, v128
    s_waitcnt lgkmcnt(0)
    """)
    T = 56
    for t in range(2):
        for g in range(4):
            k = 4 * t + g
            for p in range(2):
                u, dd, y = 132 + 2*k + p, 148 + 2*k + p, 164 + 2*k + p
                e0, e1 = ACC + 16*t + 4*g + 2*p, ACC + 16*t + 4*g + 2*p + 1
                a(f"""
                v_lshlrev_b32 v{T}, 16, v{u}
                v_and_b32 v{T+1}, 0xffff0000, v{u}
                v_lshlrev_b32 v{T+2}, 16, v{dd}
                v_and_b32 v{T+3}, 0xffff0000, v{dd}
                v_lshlrev_b32 v{T+4}, 16, v{y}
                v_and_b32 v{T+5}, 0xffff0000, v{y}
                v_fmac_f32 v{T+4}, v{T}, v{T+2}
                v_fmac_f32 v{T+5}, v{T+1}, v{T+3}
                v_mul_f32 v{e0}, v129, v{e0}
                v_mul_f32 v{e1}, v129, v{e1}
                v_fmac_f32 v{e0}, v128, v{T+4}
                v_fmac_f32 v{e1}, v128, v{T+5}
                v_cvt_pk_bf16_f32 v{64+2*(k&1)+p}, v{e0}, v{e1}
                """)
            a(f"buffer_store_dwordx2 v[{64+2*(k&1)}:{65+2*(k&1)}], v9, s[88:91], s9 offen offset:{64*t+16*g}")
    a("""
    K3_END:
    s_endpgm
    """)
```

```python
import sys
sys.path.insert(0, "gen")
from common import *
from k0 import gen_k0, K0_LDS
from k1 import gen_k1, K1_LDS
from k2 import gen_k2, K2_LDS
from k3 import gen_k3, K3_LDS

HEADER = open("gated_mix__ssm_conv_s4d__grouped_kv_mqa__prompt.s.ref").read().split("; Override launch")[0]

def build():
    a = Asm()
    gen_k0(a); gen_k1(a); gen_k2(a); gen_k3(a)
    txt = HEADER
    txt += f"; @launch kernel=k0_kernel grid=(940,1,1) block=(256,1,1) lds={K0_LDS}\n"
    txt += f"; @launch kernel=k1_kernel grid=(848,1,1) block=(256,1,1) lds={K1_LDS}\n"
    txt += f"; @launch kernel=k2_kernel grid=(256,1,1) block=(1024,1,1) lds={K2_LDS}\n"
    txt += f"; @launch kernel=k3_kernel grid=(144,1,1) block=(256,1,1) lds={K3_LDS}\n"
    txt += '.amdgcn_target "amdgcn-amd-amdhsa--gfx950"\n.text\n'
    body = a.text()
    i = body.index("k2_kernel:")
    import re
    body = re.sub(r"(buffer_store_\w+ .*offen[^\n]*)", r"\1 sc1", body[:i]) + body[i:]
    txt += body
    txt += '.section .rodata,"a"\n'
    txt += desc("k0_kernel", 128) + desc("k1_kernel", 128) + desc("k2_kernel", 128) + desc("k3_kernel", 180)
    return txt

if __name__ == "__main__":
    out = sys.argv[1] if len(sys.argv) > 1 else "gated_mix__ssm_conv_s4d__grouped_kv_mqa__prompt.s"
    open(out, "w").write(build())
```

```python
from common import *
from k1 import gen_kgen, KG_LDS
K0_LDS = KG_LDS
NKG = 576
NX = 64; NU = 144; NW = 156

def gen_k0(a):
    kernel_head(a, "k0_kernel")
    a(f"""
    s_cmp_ge_u32 s2, {NKG+NX+NU+NW}
    s_cbranch_scc1 K0_END
    s_load_dwordx16 s[16:31], s[0:1], 0
    s_load_dwordx8 s[32:39], s[0:1], 64
    s_load_dwordx2 s[40:41], s[0:1], 96
    s_load_dwordx2 s[46:47], s[0:1], 120
    v_and_b32 v2, 63, v0
    v_lshrrev_b32 v1, 6, v0
    s_nop 0
    v_readfirstlane_b32 s3, v1
    v_and_b32 v5, 31, v2
    v_lshrrev_b32 v6, 5, v2
    v_lshlrev_b32 v7, 4, v2
    s_waitcnt lgkmcnt(0)
    """)
    srd(a, 48, 16, 2359296)
    srd(a, 56, 46, 0x10000000)
    a(f"""
    s_cmp_lt_u32 s2, {NKG}
    s_cbranch_scc1 K0_KG
    s_sub_u32 s2, s2, {NKG}
    s_cmp_ge_u32 s2, {NU}
    s_cbranch_scc1 K0_XW
    """)
    a(f"""
    s_mul_i32 s4, s2, 7282
    s_lshr_b32 s4, s4, 16
    s_mul_i32 s6, s4, 9
    s_sub_u32 s6, s2, s6
    v_lshrrev_b32 v8, 3, v2
    v_mul_u32_u24 v8, 1152, v8
    v_and_b32 v9, 7, v2
    v_lshl_add_u32 v8, v9, 4, v8
    s_mul_i32 s7, s4, {128*1152}
    s_lshl_b32 s8, s6, 7
    s_add_u32 s7, s7, s8
    s_mul_i32 s8, s3, {32*1152}
    s_add_u32 s7, s7, s8
    s_lshl_b32 s9, s3, 12
    """)
    for i in range(4):
        a(f"s_add_u32 m0, s9, {i*1024}")
        a(f"s_add_u32 s10, s7, {i*8*1152}")
        a(f"buffer_load_dwordx4 v8, s[48:51], s10 offen lds")
    a(f"""
    v_bfe_u32 v10, v2, 2, 2
    v_lshlrev_b32 v10, 7, v10
    v_lshrrev_b32 v11, 4, v2
    v_lshl_add_u32 v10, v11, 5, v10
    v_and_b32 v11, 3, v2
    v_lshl_add_u32 v10, v11, 3, v10
    v_add_u32 v10, s9, v10
    v_lshlrev_b32 v12, 12, v2
    s_lshl_b32 s10, s6, 18
    s_lshl_b32 s11, s4, 8
    s_add_u32 s10, s10, s11
    s_lshl_b32 s11, s3, 6
    s_add_u32 s10, s10, s11
    s_add_u32 s10, s10, {UT_OFF}
    s_waitcnt vmcnt(0)
    """)
    for o in range(4):
        a(f"ds_read_b64_tr_b16 v[{16+4*o}:{17+4*o}], v10 offset:{o*1024}")
        a(f"ds_read_b64_tr_b16 v[{18+4*o}:{19+4*o}], v10 offset:{o*1024+512}")
    for o in range(4):
        a(f"s_waitcnt lgkmcnt({6-2*o})")
        a(f"buffer_store_dwordx4 v[{16+4*o}:{19+4*o}], v12, s[56:59], s10 offen offset:{16*o}")
    a("s_endpgm")
    a.label("K0_XW")
    a(f"""
    s_sub_u32 s2, s2, {NU}
    s_cmp_ge_u32 s2, {NX}
    s_cbranch_scc1 K0_W
    """)
    a(f"""
    s_and_b32 s4, s2, 7
    s_lshl_b32 s4, s4, 3
    s_lshr_b32 s2, s2, 3
    s_add_u32 s2, s2, s4
    s_lshl_b32 s4, s2, 5
    v_add_u32 v8, s4, v5
    s_movk_i32 s5, 1152
    v_mul_lo_u32 v8, v8, s5
    v_lshl_add_u32 v8, v6, 4, v8
    s_mul_i32 s6, s3, {9*32}
    s_mul_i32 s7, s2, 36864
    s_mul_i32 s8, s3, {9*1024}
    s_add_u32 s7, s7, s8
    s_add_u32 s7, s7, {XF_OFF}
    """)
    for i in range(9):
        a(f"buffer_load_dwordx4 v[{16+4*i}:{19+4*i}], v8, s[48:51], s6 offen offset:{32*i}")
    for i in range(9):
        a(f"s_waitcnt vmcnt({8})")
        a(f"s_add_u32 s9, s7, {i*1024}")
        a(f"buffer_store_dwordx4 v[{16+4*i}:{19+4*i}], v7, s[56:59], s9 offen")
    a("s_endpgm")
    a.label("K0_W")
    a(f"""
    s_sub_u32 s2, s2, {NX}
    s_mul_i32 s4, s2, 21846
    s_lshr_b32 s4, s4, 16
    s_mul_i32 s5, s4, 3
    s_sub_u32 s5, s2, s5
    s_mov_b32 s2, s4
    s_lshl_b32 s5, s5, 2
    s_add_u32 s3, s3, s5
    s_mov_b32 s60, 1152
    s_mul_i32 s61, s2, 36
    s_mov_b32 s62, {WQF_OFF}
    s_mul_i32 s63, s2, 36864
    s_add_u32 s62, s62, s63
    s_mov_b32 s64, s32
    s_mov_b32 s65, s33
    s_mov_b32 s66, 663552
    s_cmp_lt_u32 s2, 32
    s_cbranch_scc1 K0_WGO
    s_mov_b32 s60, 36
    s_mov_b32 s61, 0
    s_mov_b32 s62, {WKF_OFF}
    s_mov_b32 s64, s34
    s_mov_b32 s65, s35
    s_mov_b32 s66, 20736
    s_cmp_eq_u32 s2, 32
    s_cbranch_scc1 K0_WGO
    s_mov_b32 s62, {WVF_OFF}
    s_mov_b32 s64, s36
    s_mov_b32 s65, s37
    s_cmp_eq_u32 s2, 33
    s_cbranch_scc1 K0_WGO
    s_sub_u32 s67, s2, 34
    s_mov_b32 s60, 1152
    s_lshl_b32 s61, s67, 6
    s_mul_i32 s63, s67, 36864
    s_add_u32 s62, s63, {WOF_OFF}
    s_mov_b32 s64, s38
    s_mov_b32 s65, s39
    s_mov_b32 s66, 663552
    K0_WGO:
    s_mov_b32 s52, s64
    s_and_b32 s53, s65, 0xffff
    s_mov_b32 s54, s66
    s_mov_b32 s55, 0x00020000
    """)
    srd(a, 72, 40, 1152)
    a(f"""
    s_lshl_b32 s67, s60, 3
    v_mul_lo_u32 v8, v6, s67
    v_lshl_add_u32 v8, v5, 1, v8
    v_add_u32 v8, s61, v8
    s_mul_i32 s68, s3, 48
    s_mul_i32 s68, s68, s60
    s_mul_i32 s69, s3, {3*1024}
    s_add_u32 s62, s62, s69
    s_mul_i32 s70, s3, {3*32}
    v_lshlrev_b32 v9, 4, v6
    v_cmp_eq_u32 s[76:77], 18, v5
    s_nop 3
    s_cmp_eq_u32 s2, 32
    s_cselect_b64 s[76:77], s[76:77], 0
    """)
    for i in range(3):
        b = 16 + 8 * i
        for t in range(8):
            a(f"buffer_load_ushort v{b+t}, v8, s[52:55], s68 offen")
            a("s_add_u32 s68, s68, s60")
        a(f"buffer_load_dwordx4 v[{88+4*i}:{91+4*i}], v9, s[72:75], s70 offen offset:{32*i}")
        a("s_add_u32 s68, s68, s67")
    for i in range(3):
        b = 16 + 8 * i
        a(f"s_waitcnt vmcnt({min(63, 9*(2-i) + i)})")
        for p in range(4):
            a(f"v_lshl_or_b32 v{b+p}, v{b+2*p+1}, 16, v{b+2*p}")
        for p in range(4):
            a(f"v_cndmask_b32 v{b+p}, v{b+p}, v{88+4*i+p}, s[76:77]")
        a(f"s_add_u32 s71, s62, {i*1024}")
        a(f"buffer_store_dwordx4 v[{b}:{b+3}], v7, s[56:59], s71 offen")
    a("""
    K0_END:
    s_endpgm
    """)
    a.label("K0_KG")
    gen_kgen(a)
```

```python
from common import *
from gemm import *
import math

LOG2E = 1.4426950408889634
QSCALE = LOG2E / math.sqrt(18.0)

CP = 0; CS = 4416
KG = 0; KGW = 8704; KGR = 272
UB = 36864
RV = 47104
TB = 34816
K1_LDS = 49152
KG_LDS = 36352
ZIDX = 700
RVG = 4224
RVG_OFF = 28 << 20
NCONV = 576; NQ = 256; NKV = 16

def cmul(a, dr, di, ar, ai, br, bi, nbi):
    a(f"v_mul_f32 v{dr}, v{ar}, v{br}")
    a(f"v_mul_f32 v{di}, v{ar}, v{bi}")
    a(f"v_fmac_f32 v{dr}, v{ai}, v{nbi}")
    a(f"v_fmac_f32 v{di}, v{ai}, v{br}")

def cexp(a, dr, di, P0, P1, posreg, t):
    a(f"""
    v_mul_f32 v{t}, {posreg}, v{P0}
    v_mul_f32 v{t+1}, {posreg}, v{P1}
    v_exp_f32 v{t}, v{t}
    v_fract_f32 v{t+1}, v{t+1}
    v_cos_f32 v{dr}, v{t+1}
    v_sin_f32 v{di}, v{t+1}
    s_nop 0
    v_mul_f32 v{dr}, v{t}, v{dr}
    v_mul_f32 v{di}, v{t}, v{di}
    """)

def gen_kgen(a):
    srd(a, 56, 46, 0x10000000)
    srd(a, 68, 18, 147456)
    srd(a, 72, 20, 147456)
    srd(a, 76, 22, 147456)
    srd(a, 80, 24, 147456)
    srd(a, 84, 26, 1152)
    a("""
    s_lshl_b32 s4, s2, 1
    v_lshlrev_b32 v4, 1, v2
    s_lshl_b32 s5, s2, 8
    v_mov_b32 v5, s4
    buffer_load_ushort v24, v5, s[84:87], 0 offen
    buffer_load_ushort v16, v4, s[68:71], s5 offen
    buffer_load_ushort v17, v4, s[72:75], s5 offen
    buffer_load_ushort v18, v4, s[76:79], s5 offen
    buffer_load_ushort v19, v4, s[80:83], s5 offen
    buffer_load_ushort v20, v4, s[68:71], s5 offen offset:128
    buffer_load_ushort v21, v4, s[72:75], s5 offen offset:128
    buffer_load_ushort v22, v4, s[76:79], s5 offen offset:128
    buffer_load_ushort v23, v4, s[80:83], s5 offen offset:128
    """)
    a(f"""
    v_mov_b32 v28, 0
    v_mov_b32 v29, 0
    v_mov_b32 v30, 0
    v_mov_b32 v31, 0
    v_lshlrev_b32 v6, 4, v0
    v_cmp_gt_u32 vcc, 64, v0
    s_and_saveexec_b64 s[12:13], vcc
    v_mov_b32 v7, {TB + 2*ZIDX}
    ds_write_b16 v7, v28
    s_mov_b64 exec, s[12:13]
    s_mov_b32 s8, 1
    s_lshl_b32 s8, s8, s3
    v_cvt_f32_u32 v6, s8
    s_nop 0
    v_readfirstlane_b32 s88, v6
    v_mul_f32 v6, 0x41800000, v6
    s_nop 0
    v_readfirstlane_b32 s89, v6
    v_mul_f32 v6, 0x41000000, v6
    s_cmp_eq_u32 s3, 0
    s_cselect_b32 s6, 0, 8
    v_readfirstlane_b32 s90, v6
    s_nop 3
    s_cselect_b32 s90, 0, s90
    s_mul_i32 s91, s3, {KGW}
    v_lshlrev_b32 v8, 2, v2
    v_add_u32 v8, s91, v8
    v_and_b32 v4, 15, v2
    v_lshrrev_b32 v5, 4, v2
    v_mul_u32_u24 v9, {KGR}, v4
    v_lshl_add_u32 v9, v5, 4, v9
    v_add_u32 v9, s91, v9
    v_mov_b32 v40, 0
    v_mov_b32 v41, 0
    v_mov_b32 v42, 0
    v_mov_b32 v43, 0
    s_waitcnt vmcnt(0)
    v_lshlrev_b32 v24, 16, v24
    v_mul_f32 v24, {f32bits(LOG2E)}, v24
    v_exp_f32 v24, v24
    s_nop 0
    v_cvt_pk_bf16_f32 v24, v24, v24
    v_lshlrev_b32 v24, 16, v24
    """)
    for ps in range(2):
        r0 = 16 + 4 * ps
        P0, P1, P2, P3 = 44, 45, 46, 47
        a(f"""
        v_lshlrev_b32 v{r0}, 16, v{r0}
        v_lshlrev_b32 v{r0+1}, 16, v{r0+1}
        v_lshlrev_b32 v{r0+2}, 16, v{r0+2}
        v_lshlrev_b32 v{r0+3}, 16, v{r0+3}
        v_mul_f32 v{r0}, {f32bits(LOG2E)}, v{r0}
        v_exp_f32 v{r0}, v{r0}
        s_nop 0
        v_cvt_pk_bf16_f32 v{r0}, v{r0}, v{r0}
        v_lshlrev_b32 v{r0}, 16, v{r0}
        v_mul_f32 v{r0}, v{r0}, v24
        v_mul_f32 v{P0}, {f32bits(-LOG2E)}, v{r0}
        v_mul_f32 v{r0+1}, v{r0+1}, v24
        v_mul_f32 v{P1}, {f32bits(1.0/(2*math.pi))}, v{r0+1}
        v_mul_f32 v{r0+2}, v{r0+2}, v24
        v_add_f32 v{P2}, v{r0+2}, v{r0+2}
        v_mul_f32 v{r0+3}, v{r0+3}, v24
        v_add_f32 v{P3}, v{r0+3}, v{r0+3}
        """)
        cexp(a, 48, 49, P0, P1, "s88", 60)
        cexp(a, 51, 52, P0, P1, "s89", 60)
        cexp(a, 54, 55, P0, P1, "s90", 60)
        a(f"""
        v_sub_f32 v50, 0, v49
        v_sub_f32 v53, 0, v52
        v_sub_f32 v58, 0, v{P3}
        """)
        cmul(a, 56, 57, 54, 55, P2, P3, 58)
        if ps == 1:
            a("s_waitcnt lgkmcnt(0)")
        a(f"v_mov_b32 v72, 0x00003f80")
        a(f"ds_write_b32 v8, v72 offset:{16*KGR}")
        a("v_cvt_pk_bf16_f32 v73, v56, v57")
        a(f"ds_write_b32 v8, v73 offset:0")
        fprev, gprev = None, (56, 57)
        for j in range(1, 16):
            fc = (64, 65) if j & 1 else (66, 67)
            gc = (68, 69) if j & 1 else (70, 71)
            if j == 1:
                a(f"v_mov_b32 v64, v48\nv_mov_b32 v65, v49")
            else:
                cmul(a, fc[0], fc[1], fprev[0], fprev[1], 48, 49, 50)
            cmul(a, gc[0], gc[1], gprev[0], gprev[1], 51, 52, 53)
            a(f"v_cvt_pk_bf16_f32 v72, v{fc[0]}, -v{fc[1]}")
            a(f"v_cvt_pk_bf16_f32 v73, v{gc[0]}, v{gc[1]}")
            a(f"ds_write_b32 v8, v72 offset:{(16+j)*KGR}")
            a(f"ds_write_b32 v8, v73 offset:{j*KGR}")
            fprev, gprev = fc, gc
        a("s_waitcnt lgkmcnt(0)")
        for st in range(4):
            a(f"ds_read_b128 v[{76+8*st}:{79+8*st}], v9 offset:{64*st}")
            a(f"ds_read_b128 v[{80+8*st}:{83+8*st}], v9 offset:{16*KGR + 64*st}")
        for st in range(4):
            a(f"s_waitcnt lgkmcnt({6-2*st})")
            a(f"v_mfma_f32_16x16x32_bf16 v[40:43], v[{76+8*st}:{79+8*st}], v[{80+8*st}:{83+8*st}], v[40:43]")
    a(f"""
    s_nop 7
    """)
    a(f"""
    s_nop 4
    s_lshl_b32 s7, s3, 7
    s_lshl_b32 s8, s6, 4
    s_add_u32 s7, s7, s8
    v_lshl_add_u32 v9, v5, 6, v4
    v_add_u32 v9, s7, v9
    v_lshlrev_b32 v9, 1, v9
    v_cvt_pk_bf16_f32 v44, v40, v41
    v_cvt_pk_bf16_f32 v45, v42, v43
    s_cmp_eq_u32 s3, 0
    s_cbranch_scc1 K0_TW_ALL
    s_cmp_eq_u32 s3, 3
    s_cbranch_scc0 K0_TW_HALF
    s_mov_b32 exec_lo, 0
    s_mov_b32 exec_hi, 0xffff
    ds_write_b16 v9, v44 offset:{TB}
    K0_TW_HALF:
    s_mov_b32 exec_lo, -1
    s_mov_b32 exec_hi, 0
    K0_TW_ALL:
    ds_write_b16 v9, v44 offset:{TB}
    ds_write_b16_d16_hi v9, v44 offset:{TB+32}
    ds_write_b16 v9, v45 offset:{TB+64}
    ds_write_b16_d16_hi v9, v45 offset:{TB+96}
    s_mov_b64 exec, -1
    s_waitcnt lgkmcnt(0)
    s_barrier
    """)
    def d1(cbase):
        a(f"v_add_u32 v10, {cbase}, v0" if cbase else "v_mov_b32 v10, v0")
        a(f"""
        v_lshlrev_b32 v11, 3, v10
        v_sub_u32 v11, 2048, v11
        """)
        for i in range(8):
            a(f"v_subrev_u32 v{16+i}, {i}, v11" if i else "v_mov_b32 v16, v11")
        for i in range(8):
            a(f"v_cvt_f32_i32 v{24+i}, v{16+i}")
        for p in range(4):
            a(f"v_cvt_pk_bf16_f32 v{32+p}, v{24+2*p}, v{25+2*p}")
        for i in range(8):
            p = i // 2
            if i & 1:
                a(f"v_lshrrev_b32 v{24+i}, 16, v{32+p}")
            else:
                a(f"v_and_b32 v{24+i}, 0xffff, v{32+p}")
            a(f"v_subrev_u32 v{24+i}, 17024, v{24+i}")
        for i in range(8):
            a(f"v_cmp_gt_i32 s[{92+2*(i&3)}:{93+2*(i&3)}], s100, v{16+i}")
            if (i & 3) == 3:
                for k in range(i - 3, i + 1):
                    a(f"v_cndmask_b32 v{24+k}, v{24+k}, v{16+k}, s[{92+2*(k&3)}:{93+2*(k&3)}]")
        if cbase:
            for i in range(8):
                a(f"v_cmp_gt_i32 vcc, 0, v{16+i}")
                a("s_nop 1")
                a(f"v_cndmask_b32 v{24+i}, v{24+i}, v12, vcc")
        for i in range(8):
            a(f"v_lshlrev_b32 v{24+i}, 1, v{24+i}")
        for i in range(8):
            a(f"ds_read_u16 v{16+i}, v{24+i} offset:{TB}")
        a(f"""
        v_lshlrev_b32 v13, 4, v10
        s_waitcnt lgkmcnt(0)
        v_lshl_or_b32 v36, v17, 16, v16
        v_lshl_or_b32 v37, v19, 16, v18
        v_lshl_or_b32 v38, v21, 16, v20
        v_lshl_or_b32 v39, v23, 16, v22
        buffer_store_dwordx4 v[36:39], v13, s[56:59], s101 offen
        """)
    a(f"v_mov_b32 v12, {ZIDX}")
    a(f"s_mul_i32 s101, s2, {RVG}")
    a(f"s_add_u32 s101, s101, {RVG_OFF}")
    a("s_movk_i32 s100, 128")
    d1(0)
    a("""
    v_cmp_gt_u32 vcc, 5, v0
    s_and_saveexec_b64 s[12:13], vcc
    s_cbranch_execz K0_D1_SKIP
    """)
    d1(256)
    a("""
    K0_D1_SKIP:
    s_endpgm
    """)


def gen_k1(a):
    kernel_head(a, "k1_kernel")
    a(f"""
    s_cmp_ge_u32 s2, {NCONV+NQ+NKV}
    s_cbranch_scc1 K1_END
    s_load_dwordx16 s[16:31], s[0:1], 0
    s_load_dwordx16 s[32:47], s[0:1], 64
    v_and_b32 v2, 63, v0
    v_lshrrev_b32 v1, 6, v0
    s_nop 0
    v_readfirstlane_b32 s3, v1
    s_waitcnt lgkmcnt(0)
    s_cmp_ge_u32 s2, {NQ+NKV}
    s_cbranch_scc1 K1_CONV
    s_sub_u32 s2, s2, {NKV}
    s_cmp_lt_i32 s2, 0
    s_cselect_b32 s8, {NQ+NKV}, 0
    s_add_u32 s2, s2, s8
    """)
    srd(a, 56, 46, 0x10000000)
    a(f"""
    v_and_b32 v5, 31, v2
    v_lshrrev_b32 v6, 5, v2
    v_lshlrev_b32 v7, 4, v2
    s_lshl_b32 s4, s2, 2
    s_add_u32 s4, s4, s3
    s_cmp_lt_u32 s2, {NQ}
    s_cbranch_scc0 K1_KV
    s_and_b32 s7, s2, 7
    s_lshr_b32 s8, s2, 3
    s_lshr_b32 s5, s8, 4
    s_lshl_b32 s7, s7, 1
    s_add_u32 s5, s5, s7
    s_lshl_b32 s5, s5, 2
    s_add_u32 s5, s5, s3
    s_and_b32 s6, s8, 15
    s_mul_i32 s80, s5, 36864
    s_add_u32 s80, s80, {XF_OFF}
    s_lshl_b32 s10, s3, 10
    s_mul_i32 s84, s6, {2*36864}
    s_add_u32 s84, s84, {WQF_OFF}
    s_add_u32 s84, s84, s10
    s_add_u32 s85, s84, 36864
    """)
    vm = VM(a)
    gemm_loop(a, 0, 2, ['A', 'A'], 'K1_QL')
    a(f"s_mov_b32 s9, {f32bits(QSCALE)}")
    for c in range(2):
        for r in range(10):
            a(f"v_mul_f32 v{ACC+16*c+r}, s9, v{ACC+16*c+r}")
    a("""
    v_cmp_gt_u32 vcc, 32, v2
    v_mov_b32 v101, 0
    v_mov_b32 v102, 0
    v_mov_b32 v103, 0
    v_mov_b32 v109, 0
    v_mov_b32 v110, 0
    v_mov_b32 v111, 0
    s_lshl_b32 s9, s6, 7
    s_add_u32 s9, s9, s5
    s_lshl_b32 s9, s9, 11
    """)
    for t in range(2):
        c = ACC + 16 * t
        b = 96 + 8 * t
        for p in range(4):
            a(f"v_cvt_pk_bf16_f32 v{b+p}, v{c+2*p}, v{c+2*p+1}")
        a(f"v_cvt_pk_bf16_f32 v{b+4}, v{c+8}, v{c+9}")
        a(f"v_cndmask_b32 v{b+4}, 0, v{b+4}, vcc")
        a(f"s_add_u32 s12, s9, {t*64*2048}")
        a(f"buffer_store_dwordx4 v[{b}:{b+3}], v7, s[56:59], s12 offen")
        a(f"buffer_store_dwordx4 v[{b+4}:{b+7}], v7, s[56:59], s12 offen offset:1024")
    a("s_endpgm")

    a.label("K1_KV")
    a(f"""
    s_sub_u32 s5, s4, {NQ*4}
    s_mul_i32 s80, s5, 36864
    s_add_u32 s80, s80, {XF_OFF}
    s_lshl_b32 s10, s3, 10
    s_add_u32 s84, s10, {WKF_OFF}
    s_add_u32 s85, s10, {WVF_OFF}
    """)
    vm = VM(a)
    gemm_loop(a, 0, 2, ['A', 'B'], 'K1_KL')
    a(f"""
    s_lshr_b32 s9, s5, 3
    s_mul_i32 s9, s9, {CHUNK}
    s_add_u32 s9, s9, {KV_OFF}
    s_and_b32 s10, s5, 7
    s_lshl_b32 s11, s10, 10
    s_add_u32 s11, s11, s9
    """)
    for p in range(4):
        a(f"v_cvt_pk_bf16_f32 v{96+p}, v{ACC+2*p}, v{ACC+2*p+1}")
    a(f"v_cvt_pk_bf16_f32 v100, v{ACC+8}, v{ACC+9}")
    a("buffer_store_dwordx4 v[96:99], v7, s[56:59], s11 offen")
    for p in range(8):
        a(f"v_cvt_pk_bf16_f32 v{104+p}, v{ACC+16+2*p}, v{ACC+16+2*p+1}")
    a(f"""
    v_mov_b32 v10, 0x3f803f80
    v_cmp_eq_u32 vcc, 18, v5
    s_nop 1
    """)
    for p in range(8):
        a(f"v_cndmask_b32 v{104+p}, v{104+p}, v10, vcc")
    a(f"""
    s_mul_i32 s11, s10, {VT}
    s_add_u32 s11, s11, s9
    s_add_u32 s11, s11, {VV_OFF}
    v_mul_u32_u24 v4, 304, v6
    v_lshl_add_u32 v4, v5, 4, v4
    v_cmp_gt_u32 vcc, 19, v5
    s_and_saveexec_b64 s[12:13], vcc
    buffer_store_dwordx4 v[104:107], v4, s[56:59], s11 offen
    buffer_store_dwordx4 v[108:111], v4, s[56:59], s11 offen offset:608
    s_lshl_b32 s11, s10, 7
    s_add_u32 s11, s11, s9
    s_add_u32 s11, s11, {KT_OFF}
    s_mov_b32 exec_lo, -1
    s_mov_b32 exec_hi, 0
    v_lshlrev_b32 v4, 2, v5
    buffer_store_dword v100, v4, s[56:59], s11 offen
    v_cvt_pk_bf16_f32 v120, v{ACC+10}, v{ACC+10}
    v_lshlrev_b32 v120, 16, v120
    v_mul_f32 v120, {f32bits(-LOG2E)}, v120
    v_exp_f32 v120, v120
    s_nop 0
    v_add_f32 v120, 1.0, v120
    v_rcp_f32 v120, v120
    s_nop 0
    v_cvt_pk_bf16_f32 v120, v120, v120
    v_lshlrev_b32 v120, 16, v120
    s_lshl_b32 s11, s5, 7
    s_add_u32 s11, s11, {G_OFF}
    buffer_store_dword v120, v4, s[56:59], s11 offen
    s_endpgm
    """)

    a("""
    K1_END:
    s_endpgm
    """)
    a.label("K1_CONV")
    a(f"""
    s_sub_u32 s2, s2, {NQ+NKV}
    s_mov_b32 s99, 0
    """)
    gen_conv(a)


def gen_conv(a):
    srd(a, 56, 46, 0x10000000)
    a(f"""
    v_lshlrev_b32 v3, 4, v0
    s_lshl_b32 s7, s2, 12
    s_add_u32 s7, s7, {UT_OFF}
    buffer_load_dwordx4 v[112:115], v3, s[56:59], s7 offen
    s_mul_i32 s8, s2, {RVG}
    s_add_u32 s8, s8, {RVG_OFF}
    buffer_load_dwordx4 v[20:23], v3, s[56:59], s8 offen
    s_sub_u32 s9, s8, 16
    buffer_load_dwordx4 v[16:19], v3, s[56:59], s9 offen
    buffer_load_dwordx4 v[52:55], v3, s[56:59], s8 offen offset:4080
    s_add_u32 s9, s8, 4096
    buffer_load_dwordx4 v[48:51], v3, s[56:59], s9 offen
    v_mov_b32 v28, 0
    v_mov_b32 v29, 0
    v_mov_b32 v30, 0
    v_mov_b32 v31, 0
    v_lshlrev_b32 v6, 4, v0
    v_add_u32 v6, s99, v6
    ds_write_b128 v6, v[28:31] offset:{UB}
    v_cmp_gt_u32 vcc, 64, v0
    s_and_saveexec_b64 s[12:13], vcc
    ds_write_b128 v6, v[28:31] offset:{UB+4096}
    s_mov_b64 exec, s[12:13]
    v_lshrrev_b32 v6, 2, v0
    v_mul_u32_u24 v6, 80, v6
    v_and_b32 v7, 3, v0
    v_lshl_add_u32 v6, v7, 4, v6
    v_add_u32 v6, s99, v6
    s_waitcnt vmcnt(4)
    ds_write_b128 v6, v[112:115] offset:{UB + 64*80}
    s_waitcnt vmcnt(2)
    """)
    def d2(cbase):
        a(f"v_add_u32 v10, {cbase}, v0" if cbase else "v_mov_b32 v10, v0")
        a("v_lshlrev_b32 v13, 4, v10")
        a("v_add_u32 v13, s99, v13")
        if cbase:
            a("s_waitcnt vmcnt(0)")
            for k in range(4):
                a(f"v_mov_b32 v{16+k}, v{52+k}")
                a(f"v_mov_b32 v{20+k}, v{48+k}")
        for k in range(7):
            a(f"v_mov_b32 v{24+k}, v{17+k}")
        for k in range(7):
            a(f"v_alignbit_b32 v{32+k}, v{17+k}, v{16+k}, 16")
        for k in range(6):
            a(f"v_alignbit_b32 v{40+k}, v{18+k}, v{17+k}, 16")
        for r in range(8):
            if r % 2 == 0:
                st = 4 - r // 2
                base = 16 + st if st % 2 == 0 else 24 + st - 1
            else:
                st = (7 - r) // 2
                base = 32 + st if st % 2 == 0 else 40 + st - 1
            a(f"ds_write_b128 v13, v[{base}:{base+3}] offset:{CP + r*CS}")
    d2(0)
    a("""
    v_cmp_gt_u32 vcc, 5, v0
    s_and_saveexec_b64 s[12:13], vcc
    s_cbranch_execz K2_D2_SKIP
    """)
    d2(256)
    a("""
    K2_D2_SKIP:
    s_mov_b64 exec, -1
    s_waitcnt vmcnt(0) lgkmcnt(0)
    s_barrier
    """)
    a(f"""
    v_and_b32 v4, 31, v2
    v_lshrrev_b32 v5, 5, v2
    v_and_b32 v6, 7, v4
    v_sub_u32 v7, v4, v6
    v_mul_u32_u24 v8, {CS}, v6
    v_lshlrev_b32 v9, 4, v5
    v_add_u32 v8, v8, v9
    v_lshlrev_b32 v7, 1, v7
    v_sub_u32 v8, v8, v7
    s_lshl_b32 s8, s3, 5
    s_sub_u32 s8, {CP + 4096 - 32*126 + 32*127 - 128*31}, s8
    v_add_u32 v8, s8, v8
    v_add_u32 v8, s99, v8
    s_lshr_b32 s8, s3, 1
    s_mul_i32 s8, s8, 80
    s_sub_u32 s8, {UB + 2*80}, s8
    s_and_b32 s9, s3, 1
    s_xor_b32 s9, s9, 1
    s_lshl_b32 s9, s9, 5
    s_add_u32 s8, s8, s9
    v_mul_u32_u24 v10, 80, v4
    v_add_u32 v10, v10, v9
    v_add_u32 v10, s8, v10
    v_add_u32 v10, s99, v10
    """)
    for r in range(32):
        a(f"v_mov_b32 v{64+r}, 0")
    def rd(i, sl):
        b = 16 + 12 * sl
        a(f"ds_read_b128 v[{b}:{b+3}], v8 offset:{128*(31-i)}")
        a(f"ds_read_b128 v[{b+4}:{b+7}], v10 offset:{(32+62-2*i)*80}")
        if i < 16:
            a(f"ds_read_b128 v[{b+8}:{b+11}], v10 offset:{(62-2*i)*80}")
    cnt = lambda i: 3 if i < 16 else 2
    D = 3
    for i in range(D): rd(i, i % 4)
    for i in range(32):
        if i + D < 32: rd(i + D, (i + D) % 4)
        outn = sum(cnt(k) for k in range(i + 1, min(32, i + D + 1)))
        a(f"s_waitcnt lgkmcnt({outn})")
        b = 16 + 12 * (i % 4)
        a(f"v_mfma_f32_32x32x16_bf16 v[80:95], v[{b}:{b+3}], v[{b+4}:{b+7}], v[80:95]")
        if i < 16:
            a(f"v_mfma_f32_32x32x16_bf16 v[64:79], v[{b}:{b+3}], v[{b+8}:{b+11}], v[64:79]")
    a(f"""
    s_nop 15
    s_barrier
    s_mul_i32 s8, s3, 9216
    v_mul_u32_u24 v8, 144, v4
    v_add_u32 v8, s8, v8
    v_add_u32 v8, v8, v9
    v_add_u32 v8, s99, v8
    """)
    for nt in range(2):
        for g in range(4):
            b = 64 + 16 * nt + 4 * g
            a(f"ds_write_b128 v8, v[{b}:{b+3}] offset:{nt*32*144 + g*32}")
    a(f"""
    s_waitcnt lgkmcnt(0)
    s_barrier
    v_lshrrev_b32 v8, 2, v0
    v_mul_u32_u24 v8, 144, v8
    v_and_b32 v9, 3, v0
    v_lshl_add_u32 v8, v9, 5, v8
    v_add_u32 v8, s99, v8
    """)
    for w in range(4):
        a(f"ds_read_b128 v[{16+8*w}:{19+8*w}], v8 offset:{w*9216}")
        a(f"ds_read_b128 v[{20+8*w}:{23+8*w}], v8 offset:{w*9216+16}")
    a("s_waitcnt lgkmcnt(0)")
    for k in range(8):
        a(f"v_add_f32 v{16+k}, v{16+k}, v{24+k}")
        a(f"v_add_f32 v{32+k}, v{32+k}, v{40+k}")
    for k in range(8):
        a(f"v_add_f32 v{16+k}, v{16+k}, v{32+k}")
    for p in range(4):
        a(f"v_cvt_pk_bf16_f32 v{48+p}, v{16+2*p}, v{17+2*p}")
    a(f"""
    s_lshl_b32 s8, s2, 12
    s_add_u32 s8, s8, {YT_OFF}
    v_lshlrev_b32 v8, 4, v0
    buffer_store_dwordx4 v[48:51], v8, s[56:59], s8 offen
    s_endpgm
    """)
```

```python
from common import *
from k1 import gen_conv
NCV = 0

K2_LDS = 8 * CHUNK + 1024

QB1 = 4
QB2 = 8
KA1 = 12
KA2 = 20
VA = 28
PP = 44
SS = 52
OO = 84
BK = 100
TMP = 112
AK = 124
AT = 125
AV = 126
MC = 127

THRESH = 0x53800000

def rd_k(a, t, buf):
    c, tin = divmod(t, 8)
    a(f"ds_read_b128 v[{KA1+4*buf}:{KA1+4*buf+3}], v{AK} offset:{c*CHUNK + tin*1024}")
    a(f"ds_read_b32 v{KA2+4*buf}, v{AT} offset:{c*CHUNK + tin*128}")

def rd_v(a, t, buf):
    c, tin = divmod(t, 8)
    a(f"ds_read_b128 v[{VA+8*buf}:{VA+8*buf+3}], v{AV} offset:{c*CHUNK + tin*VT}")
    a(f"ds_read_b128 v[{VA+8*buf+4}:{VA+8*buf+7}], v{AV} offset:{c*CHUNK + tin*VT + 608}")

def qk(a, buf, sb):
    s = SS + 16 * sb
    a(f"v_mfma_f32_32x32x16_bf16 v[{s}:{s+15}], v[{KA1+4*buf}:{KA1+4*buf+3}], v[{QB1}:{QB1+3}], 0")
def qk2(a, buf, sb):
    s = SS + 16 * sb
    a(f"v_mfma_f32_32x32x16_bf16 v[{s}:{s+15}], v[{KA2+4*buf}:{KA2+4*buf+3}], v[{QB2}:{QB2+3}], v[{s}:{s+15}]")

def rowmax(a, s, dst, t2):
    a(f"v_max3_f32 v{dst}, v{s}, v{s+1}, v{s+2}")
    for i in range(3, 15, 2):
        a(f"v_max3_f32 v{dst}, v{dst}, v{s+i}, v{s+i+1}")
    a(f"v_max_f32 v{dst}, v{dst}, v{s+15}")
    a(f"v_mov_b32 v{t2}, v{dst}")
    a("s_nop 1")
    a(f"v_permlane32_swap_b32 v{dst}, v{t2}")
    a("s_nop 1")
    a(f"v_max_f32 v{dst}, v{dst}, v{t2}")

def set_m(a):
    a(f"v_xor_b32 v{TMP+4}, 0x80000000, v{MC}")
    a(f"v_lshrrev_b32 v{TMP+4}, 16, v{TMP+4}")
    a(f"v_cndmask_b32 v{QB2+1}, 0, v{TMP+4}, s[20:21]")

STAMP = False
def stamp(a, i):
    if STAMP:
        a(f"s_memtime s[{80+2*i}:{81+2*i}]")
        a("s_waitcnt lgkmcnt(0)")

def gen_k2(a):
    kernel_head(a, "k2_kernel")
    stamp(a, 0)
    a(f"""
    s_cmp_ge_u32 s2, {256+NCV}
    s_cbranch_scc1 K2_END
    s_load_dwordx2 s[46:47], s[0:1], 120
    v_and_b32 v2, 63, v0
    v_lshrrev_b32 v1, 6, v0
    s_nop 0
    v_readfirstlane_b32 s3, v1
    s_waitcnt lgkmcnt(0)
    """)
    srd(a, 56, 46, 0x10000000)
    srd_off(a, 60, 46, KV_OFF, 8 * CHUNK)
    a(f"""
    s_and_b32 s30, s3, 7
    s_lshr_b32 s31, s3, 3
    s_lshr_b32 s4, s2, 3
    s_lshl_b32 s4, s4, 6
    s_and_b32 s5, s2, 7
    s_lshl_b32 s5, s5, 3
    s_add_u32 s4, s4, s5
    s_add_u32 s4, s4, s30
    s_lshl_b32 s5, s4, 11
    v_lshlrev_b32 v3, 4, v2
    buffer_load_dwordx4 v[{QB1}:{QB1+3}], v3, s[56:59], s5 offen
    buffer_load_dwordx4 v[{QB2}:{QB2+3}], v3, s[56:59], s5 offen offset:1024
    """)
    for i in range(10):
        a(f"""
        s_add_u32 s6, s3, {16*i}
        s_mul_i32 s7, s6, 3450
        s_lshr_b32 s7, s7, 16
        s_mul_i32 s9, s7, 19
        s_sub_u32 s9, s6, s9
        s_lshr_b32 s10, s7, 1
        s_and_b32 s7, s7, 1
        s_lshl_b32 s7, s7, 2
        s_add_u32 s7, s7, s10
        s_mul_i32 s7, s7, {CHUNK}
        s_lshl_b32 s9, s9, 10
        s_add_u32 s7, s7, s9
        s_cmp_lt_u32 s6, 152
        s_cselect_b32 s7, s7, {8*CHUNK}
        s_mov_b32 m0, s7
        s_nop 0
        buffer_load_dwordx4 v3, s[60:63], s7 offen lds
        """)
    a(f"""
    v_and_b32 v{TMP}, 31, v2
    v_lshrrev_b32 v{TMP+1}, 5, v2
    v_lshlrev_b32 v{AK}, 4, v2
    v_lshlrev_b32 v{AT}, 2, v{TMP}
    v_add_u32 v{AT}, {KT_OFF}, v{AT}
    v_min_u32 v{TMP+2}, 18, v{TMP}
    v_lshlrev_b32 v{TMP+2}, 4, v{TMP+2}
    v_mul_u32_u24 v{AV}, 304, v{TMP+1}
    v_add_u32 v{AV}, v{AV}, v{TMP+2}
    v_add_u32 v{AV}, {VV_OFF}, v{AV}
    s_mul_i32 s7, s31, {4*CHUNK}
    v_add_u32 v{AK}, s7, v{AK}
    v_add_u32 v{AT}, s7, v{AT}
    v_add_u32 v{AV}, s7, v{AV}
    v_cmp_gt_u32 s[20:21], 32, v2
    """)
    for b in range(2):
        a(f"v_mov_b32 v{KA2+4*b+1}, 0x00003f80")
        a(f"v_mov_b32 v{KA2+4*b+2}, 0")
        a(f"v_mov_b32 v{KA2+4*b+3}, 0")
    for r in range(16):
        a(f"v_mov_b32 v{OO+r}, 0")
    waits = [7, 5, 2, 0]
    a(f"""
    s_waitcnt vmcnt({waits[0]})
    s_barrier
    """)
    stamp(a, 1)
    rd_k(a, 0, 0)
    a("s_waitcnt lgkmcnt(0)")
    qk(a, 0, 0); qk2(a, 0, 0)
    a("s_nop 15\ns_nop 3")
    rowmax(a, SS, TMP, TMP + 1)
    a(f"""
    v_cvt_pk_bf16_f32 v{TMP}, v{TMP}, v{TMP}
    v_lshlrev_b32 v{MC}, 16, v{TMP}
    """)
    set_m(a)
    a("s_mov_b32 s8, 0")
    a.label("K2_PRIME")
    rd_k(a, 0, 0)
    rd_k(a, 1, 1)
    rd_v(a, 0, 0)
    a("s_waitcnt lgkmcnt(4)")
    qk(a, 0, 0); qk2(a, 0, 0)
    a("s_nop 15\ns_nop 3")
    a.raw(".p2align 6")
    a.label("K2_GROUP")
    for r in range(12):
        a(f"v_mov_b32 v{BK+r}, v{OO+r}")
    for t in range(8):
        cb, nb = t & 1, (t + 1) & 1
        s = SS + 16 * cb
        if t == 5:
            a("s_cmp_ge_u32 s8, 3")
            l = a.newlabel("K2W")
            a(f"s_cbranch_scc1 {l}_skip")
            for g in range(3):
                a(f"s_cmp_eq_u32 s8, {g}")
                a(f"s_cbranch_scc0 {l}_{g}")
                a(f"s_waitcnt vmcnt({waits[g+1]})")
                a.label(f"{l}_{g}")
            a("s_barrier")
            a.label(f"{l}_skip")
        a("s_waitcnt lgkmcnt(2)")
        qk(a, nb, nb)
        for i in range(0, 4): a(f"v_exp_f32 v{s+i}, v{s+i}")
        qk2(a, nb, nb)
        rd_k(a, t + 2, cb)
        for i in range(4, 8): a(f"v_exp_f32 v{s+i}, v{s+i}")
        for p in range(0, 2): a(f"v_cvt_pk_bf16_f32 v{PP+p}, v{s+2*p}, v{s+2*p+1}")
        for i in range(8, 10): a(f"v_exp_f32 v{s+i}, v{s+i}")
        for p in range(2, 4): a(f"v_cvt_pk_bf16_f32 v{PP+p}, v{s+2*p}, v{s+2*p+1}")
        for i in range(10, 12): a(f"v_exp_f32 v{s+i}, v{s+i}")
        a("s_waitcnt lgkmcnt(2)")
        a(f"v_mfma_f32_32x32x16_bf16 v[{OO}:{OO+15}], v[{VA+8*cb}:{VA+8*cb+3}], v[{PP}:{PP+3}], v[{OO}:{OO+15}]")
        for i in range(12, 16): a(f"v_exp_f32 v{s+i}, v{s+i}")
        for p in range(4, 6): a(f"v_cvt_pk_bf16_f32 v{PP+p}, v{s+2*p}, v{s+2*p+1}")
        rd_v(a, t + 1, nb)
        for p in range(6, 8): a(f"v_cvt_pk_bf16_f32 v{PP+p}, v{s+2*p}, v{s+2*p+1}")
        a("s_nop 1")
        a(f"v_mfma_f32_32x32x16_bf16 v[{OO}:{OO+15}], v[{VA+8*cb+4}:{VA+8*cb+7}], v[{PP+4}:{PP+7}], v[{OO}:{OO+15}]")
    a(f"""
    s_nop 15
    v_mov_b32 v{TMP}, {THRESH}
    v_cmp_nle_f32 vcc, v{OO+10}, v{TMP}
    s_nop 3
    s_and_b64 vcc, vcc, s[20:21]
    s_cbranch_vccnz K2_SLOW
    K2_NEXT:
    v_add_u32 v{AK}, {CHUNK}, v{AK}
    v_add_u32 v{AT}, {CHUNK}, v{AT}
    v_add_u32 v{AV}, {CHUNK}, v{AV}
    s_add_u32 s8, s8, 1
    s_cmp_lt_u32 s8, 4
    s_cbranch_scc1 K2_GROUP
    """)
    stamp(a, 2)
    if STAMP:
        a(f"""
        s_sub_u32 s82, s82, s80
        s_sub_u32 s84, s84, s80
        v_mov_b32 v{TMP}, s82
        v_mov_b32 v{TMP+1}, s84
        s_lshl_b32 s86, s4, 3
        s_add_u32 s86, s86, {12<<20}
        v_mov_b32 v{TMP+2}, 0
        buffer_store_dwordx2 v[{TMP}:{TMP+1}], v{TMP+2}, s[56:59], s86 offen
        s_nop 2
        """)
    a(f"""
    s_waitcnt lgkmcnt(0)
    s_barrier
    s_mul_i32 s7, s30, {13*256}
    v_lshlrev_b32 v{TMP+6}, 2, v2
    v_add_u32 v{TMP+6}, s7, v{TMP+6}
    s_cmp_eq_u32 s31, 0
    s_cbranch_scc1 K2_MRG0
    """)
    for r in range(12):
        a(f"ds_write_b32 v{TMP+6}, v{OO+r} offset:{r*256}")
    a(f"""
    ds_write_b32 v{TMP+6}, v{MC} offset:{12*256}
    s_waitcnt lgkmcnt(0)
    s_barrier
    s_endpgm
    K2_MRG0:
    s_barrier
    """)
    for r in range(12):
        a(f"ds_read_b32 v{BK+r}, v{TMP+6} offset:{r*256}")
    a(f"""
    ds_read_b32 v{TMP+7}, v{TMP+6} offset:{12*256}
    s_waitcnt lgkmcnt(0)
    v_max_f32 v{TMP+8}, v{MC}, v{TMP+7}
    v_sub_f32 v{TMP+9}, v{MC}, v{TMP+8}
    v_sub_f32 v{TMP+10}, v{TMP+7}, v{TMP+8}
    v_exp_f32 v{TMP+9}, v{TMP+9}
    v_exp_f32 v{TMP+10}, v{TMP+10}
    s_nop 0
    """)
    for r in range(12):
        a(f"v_mul_f32 v{OO+r}, v{OO+r}, v{TMP+9}")
        a(f"v_fmac_f32 v{OO+r}, v{BK+r}, v{TMP+10}")
    a(f"""
    v_mov_b32 v{TMP}, v{OO+10}
    v_mov_b32 v{TMP+1}, v{OO+10}
    s_nop 1
    v_permlane32_swap_b32 v{TMP+1}, v{TMP}
    s_nop 1
    v_rcp_f32 v{TMP}, v{TMP+1}
    s_nop 0
    """)
    for r in range(12):
        a(f"v_mul_f32 v{OO+r}, v{OO+r}, v{TMP}")
    for p in range(6):
        a(f"v_cvt_pk_bf16_f32 v{PP+p}, v{OO+2*p}, v{OO+2*p+1}")
    a(f"""
    s_lshr_b32 s9, s4, 6
    s_and_b32 s10, s4, 63
    s_mul_i32 s9, s9, 18
    s_mul_i32 s10, s10, 36864
    s_add_u32 s10, s10, {OF_OFF}
    v_and_b32 v{TMP+2}, 31, v2
    v_lshlrev_b32 v{TMP+2}, 4, v{TMP+2}
    v_lshrrev_b32 v{TMP+3}, 5, v2
    v_lshlrev_b32 v{TMP+3}, 2, v{TMP+3}
    v_add_u32 v{TMP+3}, s9, v{TMP+3}
    """)
    for j in range(5):
        g, p = j >> 1, j & 1
        a(f"""
        v_add_u32 v{TMP+4}, {8*g+2*p}, v{TMP+3}
        v_lshrrev_b32 v{TMP+5}, 3, v{TMP+4}
        v_lshlrev_b32 v{TMP+5}, 9, v{TMP+5}
        v_and_b32 v{TMP+4}, 7, v{TMP+4}
        v_lshl_add_u32 v{TMP+5}, v{TMP+4}, 1, v{TMP+5}
        v_add_u32 v{TMP+5}, v{TMP+5}, v{TMP+2}
        """)
        if j == 4:
            a("s_mov_b64 exec, s[20:21]")
        a(f"buffer_store_dword v{PP+j}, v{TMP+5}, s[56:59], s10 offen")
    a("""
    K2_END:
    s_endpgm
    """)
    a.label("K2_SLOW")
    a("s_waitcnt lgkmcnt(0)")
    for r in range(12):
        a(f"v_mov_b32 v{OO+r}, v{BK+r}")
    for r in range(12, 16):
        a(f"v_mov_b32 v{OO+r}, 0")
    for t in range(8):
        s = SS
        rd_k(a, t, 0)
        rd_v(a, t, 0)
        a("s_waitcnt lgkmcnt(0)")
        qk(a, 0, 0); qk2(a, 0, 0)
        a("s_nop 15\ns_nop 3")
        rowmax(a, s, TMP, TMP + 1)
        a(f"""
        v_max_f32 v{TMP}, 0, v{TMP}
        v_add_f32 v{TMP}, v{TMP}, v{MC}
        v_cvt_pk_bf16_f32 v{TMP}, v{TMP}, v{TMP}
        v_lshlrev_b32 v{TMP}, 16, v{TMP}
        v_sub_f32 v{TMP+1}, v{TMP}, v{MC}
        v_mov_b32 v{MC}, v{TMP}
        v_sub_f32 v{TMP+2}, 0, v{TMP+1}
        v_exp_f32 v{TMP+2}, v{TMP+2}
        """)
        set_m(a)
        for r in range(12):
            a(f"v_mul_f32 v{OO+r}, v{OO+r}, v{TMP+2}")
        for i in range(16):
            a(f"v_sub_f32 v{s+i}, v{s+i}, v{TMP+1}")
        for i in range(16):
            a(f"v_exp_f32 v{s+i}, v{s+i}")
        a("s_nop 0")
        for p in range(8):
            a(f"v_cvt_pk_bf16_f32 v{PP+p}, v{s+2*p}, v{s+2*p+1}")
        a("s_nop 1")
        a(f"v_mfma_f32_32x32x16_bf16 v[{OO}:{OO+15}], v[{VA}:{VA+3}], v[{PP}:{PP+3}], v[{OO}:{OO+15}]")
        a(f"v_mfma_f32_32x32x16_bf16 v[{OO}:{OO+15}], v[{VA+4}:{VA+7}], v[{PP+4}:{PP+7}], v[{OO}:{OO+15}]")
        a("s_nop 15\ns_nop 3")
    a(f"""
    v_add_u32 v{AK}, {CHUNK}, v{AK}
    v_add_u32 v{AT}, {CHUNK}, v{AT}
    v_add_u32 v{AV}, {CHUNK}, v{AV}
    s_add_u32 s8, s8, 1
    s_cmp_lt_u32 s8, 4
    s_cbranch_scc1 K2_PRIME
    v_subrev_u32 v{AK}, {CHUNK}, v{AK}
    s_sub_u32 s8, s8, 1
    s_branch K2_NEXT
    """)
```

```python
import sys, re
sys.path.insert(0,'gen')
import gen
def instrument(t, kname, nxt):
    i = t.index(kname + ":\n"); j = t.index(nxt) if nxt else t.index('.section .rodata')
    k = t[i:j]
    k = k.replace(kname + ":\n", kname + ":\n  s_memrealtime s[42:43]\n  s_mov_b32 s44, s2\n  s_waitcnt lgkmcnt(0)\n", 1)
    end = f"""  s_mov_b64 exec, -1
  s_memrealtime s[92:93]
  s_load_dwordx2 s[94:95], s[0:1], 120
  s_waitcnt lgkmcnt(0)
  s_mov_b32 s4, s94
  s_and_b32 s5, s95, 0xffff
  s_mov_b32 s6, 0x1000000
  s_mov_b32 s7, 0x00020000
  v_mov_b32 v4, s42
  v_mov_b32 v5, s92
  v_lshrrev_b32 v3, 6, v0
  s_lshl_b32 s44, s44, 4
  v_add_u32 v3, s44, v3
  v_lshlrev_b32 v3, 3, v3
  v_add_u32 v3, {12<<20}, v3
  buffer_store_dwordx2 v[4:5], v3, s[4:7], 0 offen
  s_endpgm
"""
    k = k.replace("  s_endpgm\n", end)
    return t[:i] + k + t[j:]
if __name__ == "__main__":
    t = gen.build()
    which = sys.argv[1]
    nxt = {"k0_kernel": ".globl k1_kernel", "k1_kernel": ".globl k2_kernel", "k2_kernel": ".globl k3_kernel", "k3_kernel": None}[which]
    open(sys.argv[2], "w").write(instrument(t, which, nxt))
```

```python
from common import *

class VM:
    def __init__(self, a):
        self.a = a; self.ops = []
    def issue(self, tag):
        self.ops.append(tag)
    def wait(self, tag):
        if tag not in self.ops: return
        idx = max(i for i, t in enumerate(self.ops) if t == tag)
        n = len(self.ops) - 1 - idx
        self.a(f"s_waitcnt vmcnt({n})")
        self.ops = self.ops[idx + 1:]

ACC = 16
RING = 80

def gemm_stream(a, vm, NL, NT, modes, D=3, nsteps=36):
    per = (NL + NT) * 4
    assert RING + per * (D + 1) <= 256
    def load(s):
        b = RING + per * (s % (D + 1))
        for i in range(NL):
            a(f"buffer_load_dwordx4 v[{b+4*i}:{b+4*i+3}], v7, s[56:59], s{80+i} offen")
            a(f"s_add_u32 s{80+i}, s{80+i}, 1024")
            vm.issue(("s", s))
        for t in range(NT):
            a(f"buffer_load_dwordx4 v[{b+4*NL+4*t}:{b+4*NL+4*t+3}], v7, s[56:59], s{84+t} offen")
            a(f"s_add_u32 s{84+t}, s{84+t}, 1024")
            vm.issue(("s", s))
    for s in range(D): load(s)
    for r in range(16 * NL * NT):
        a(f"v_mov_b32 v{ACC+r}, 0")
    for s in range(nsteps):
        if s + D < nsteps: load(s + D)
        vm.wait(("s", s))
        b = RING + per * (s % (D + 1))
        for i in range(NL):
            for t in range(NT):
                xb, wb = b + 4 * i, b + 4 * NL + 4 * t
                c = ACC + 16 * (i * NT + t)
                A, B = (f"v[{wb}:{wb+3}]", f"v[{xb}:{xb+3}]") if modes[t] == 'A' else (f"v[{xb}:{xb+3}]", f"v[{wb}:{wb+3}]")
                a(f"v_mfma_f32_32x32x16_bf16 v[{c}:{c+15}], {A}, {B}, v[{c}:{c+15}]")
    a("s_nop 15\ns_nop 3")

def gemm_lds2(a, vm, NT, modes, XDEP=6, nsteps=36, lds_base=0):
    SPS = 12
    STB = SPS * NT * 1024
    XR = 80
    WFB = XR + 4 * (XDEP + 1)
    NST = nsteps // SPS
    def xload(s):
        b = XR + 4 * (s % (XDEP + 1))
        a(f"buffer_load_dwordx4 v[{b}:{b+3}], v7, s[56:59], s80 offen")
        a("s_add_u32 s80, s80, 1024")
        vm.issue(("x", s))
    def dma(stage, i):
        t, q = divmod(i, SPS // 4)
        a(f"s_add_u32 m0, s10, {lds_base + (stage % 2) * STB + t * SPS * 1024 + q * 4096}")
        a(f"s_add_u32 s12, s{84+t}, {(stage * SPS + 4 * q) * 1024}")
        a(f"buffer_load_dwordx4 v7, s[56:59], s12 offen lds")
        vm.issue(("d", stage))
    PPS = SPS * NT // 4
    def wfrag(s):
        st = s // SPS
        for t in range(NT):
            b = WFB + 4 * NT * (s & 1) + 4 * t
            a(f"ds_read_b128 v[{b}:{b+3}], v7 offset:{lds_base + (st % 2) * STB + t * SPS * 1024 + (s % SPS) * 1024}")
    for i in range(PPS): dma(0, i)
    for s in range(XDEP): xload(s)
    for i in range(PPS): dma(1, i)
    for r in range(16 * NT):
        a(f"v_mov_b32 v{ACC+r}, 0")
    vm.wait(("d", 0))
    a("s_barrier")
    wfrag(0)
    for s in range(nsteps):
        st = s // SPS
        if s + 1 < nsteps:
            if s % SPS == SPS - 1:
                vm.wait(("d", st + 1))
                a("s_waitcnt lgkmcnt(0)")
                a("s_barrier")
            wfrag(s + 1)
        if s + XDEP < nsteps: xload(s + XDEP)
        if st >= 1 and st + 1 < NST and (s % SPS) < PPS:
            dma(st + 1, s % SPS)
        vm.wait(("x", s))
        a(f"s_waitcnt lgkmcnt({NT if s + 1 < nsteps else 0})")
        xb = XR + 4 * (s % (XDEP + 1))
        for t in range(NT):
            wb = WFB + 4 * NT * (s & 1) + 4 * t
            c = ACC + 16 * t
            A, B = (f"v[{wb}:{wb+3}]", f"v[{xb}:{xb+3}]") if modes[t] == 'A' else (f"v[{xb}:{xb+3}]", f"v[{wb}:{wb+3}]")
            a(f"v_mfma_f32_32x32x16_bf16 v[{c}:{c+15}], {A}, {B}, v[{c}:{c+15}]")
    a("s_nop 15\ns_nop 3")

def gemm_loop(a, pre_ops, NT, modes, name, lds_base=0):
    SPS = 12; NST = 3; XD = 5; NSL = 6
    STB = SPS * NT * 1024
    PPS = SPS * NT // 4
    XR = 80; WFB = XR + 4 * NSL
    ops = []
    need_x = {}; need_d = {}
    def sim():
        for i in range(PPS): ops.append(("d", 0))
        for s in range(XD): ops.append(("x", s))
        need_d[-1] = len(ops) - 1 - max(j for j, t in enumerate(ops) if t == ("d", 0))
        for st in range(NST):
            for i in range(SPS):
                s = st * SPS + i
                if i < PPS: ops.append(("d", st + 1))
                if i == SPS - 1:
                    need_d[st] = len(ops) - 1 - max(j for j, t in enumerate(ops) if t == ("d", st + 1))
                ops.append(("x", s + XD))
                need_x[(st, i)] = len(ops) - 1 - ops.index(("x", s))
    sim()
    def xload(slot):
        b = XR + 4 * slot
        a(f"buffer_load_dwordx4 v[{b}:{b+3}], v7, s[56:59], s80 offen")
        a("s_add_u32 s80, s80, 1024")
    def dma(i):
        t, q = divmod(i, SPS // 4)
        a(f"s_add_u32 m0, s86, {t * SPS * 1024 + q * 4096}")
        a(f"buffer_load_dwordx4 v7, s[56:59], s{84+t} offen lds")
        a(f"s_add_u32 s{84+t}, s{84+t}, 4096")
    def wfrag(i, buf):
        for t in range(NT):
            b = WFB + 4 * NT * buf + 4 * t
            a(f"ds_read_b128 v[{b}:{b+3}], v15 offset:{lds_base + t * SPS * 1024 + i * 1024}")
    a(f"s_add_u32 s86, s10, {lds_base}")
    a("v_mov_b32 v15, v7")
    for i in range(PPS): dma(i)
    for s in range(XD): xload(s % NSL)
    for r in range(16 * NT):
        a(f"v_mov_b32 v{ACC+r}, 0")
    a(f"s_xor_b32 s86, s86, {STB}")
    a(f"s_mov_b32 s87, {NST}")
    a(f"s_waitcnt vmcnt({need_d[-1]})")
    a("s_barrier")
    wfrag(0, 0)
    a.label(name)
    for i in range(SPS):
        if i < PPS: dma(i)
        if i == SPS - 1:
            a(f"s_waitcnt vmcnt({min(need_d[st] for st in range(NST))}) lgkmcnt(0)")
            a("s_barrier")
            a(f"v_xor_b32 v15, {STB}, v15")
            a(f"s_xor_b32 s86, s86, {STB}")
            wfrag(0, (i + 1) & 1)
        else:
            wfrag(i + 1, (i + 1) & 1)
        xload((i + XD) % NSL)
        a(f"s_waitcnt vmcnt({min(need_x[(st, i)] for st in range(NST))}) lgkmcnt({NT})")
        xb = XR + 4 * (i % NSL)
        for t in range(NT):
            wb = WFB + 4 * NT * (i & 1) + 4 * t
            c = ACC + 16 * t
            A, B = (f"v[{wb}:{wb+3}]", f"v[{xb}:{xb+3}]") if modes[t] == 'A' else (f"v[{xb}:{xb+3}]", f"v[{wb}:{wb+3}]")
            a(f"v_mfma_f32_32x32x16_bf16 v[{c}:{c+15}], {A}, {B}, v[{c}:{c+15}]")
    a(f"""
    s_sub_u32 s87, s87, 1
    s_cmp_lg_u32 s87, 0
    s_cbranch_scc1 {name}
    s_waitcnt vmcnt(0) lgkmcnt(0)
    s_nop 15
    """)
```

```python
from common import *

class VM:
    def __init__(self, a):
        self.a = a; self.ops = []
    def issue(self, tag):
        self.ops.append(tag)
    def wait(self, tag):
        if tag not in self.ops: return
        idx = max(i for i, t in enumerate(self.ops) if t == tag)
        n = len(self.ops) - 1 - idx
        self.a(f"s_waitcnt vmcnt({n})")
        self.ops = self.ops[idx + 1:]

ACC = 16
RING = 80

def gemm_stream(a, vm, NL, NT, modes, D=3, nsteps=36):
    per = (NL + NT) * 4
    assert RING + per * (D + 1) <= 256
    def load(s):
        b = RING + per * (s % (D + 1))
        for i in range(NL):
            a(f"buffer_load_dwordx4 v[{b+4*i}:{b+4*i+3}], v7, s[56:59], s{80+i} offen")
            a(f"s_add_u32 s{80+i}, s{80+i}, 1024")
            vm.issue(("s", s))
        for t in range(NT):
            a(f"buffer_load_dwordx4 v[{b+4*NL+4*t}:{b+4*NL+4*t+3}], v7, s[56:59], s{84+t} offen")
            a(f"s_add_u32 s{84+t}, s{84+t}, 1024")
            vm.issue(("s", s))
    for s in range(D): load(s)
    for r in range(16 * NL * NT):
        a(f"v_mov_b32 v{ACC+r}, 0")
    for s in range(nsteps):
        if s + D < nsteps: load(s + D)
        vm.wait(("s", s))
        b = RING + per * (s % (D + 1))
        for i in range(NL):
            for t in range(NT):
                xb, wb = b + 4 * i, b + 4 * NL + 4 * t
                c = ACC + 16 * (i * NT + t)
                A, B = (f"v[{wb}:{wb+3}]", f"v[{xb}:{xb+3}]") if modes[t] == 'A' else (f"v[{xb}:{xb+3}]", f"v[{wb}:{wb+3}]")
                a(f"v_mfma_f32_32x32x16_bf16 v[{c}:{c+15}], {A}, {B}, v[{c}:{c+15}]")
    a("s_nop 15\ns_nop 3")

def gemm_lds2(a, vm, NT, modes, XDEP=6, nsteps=36, lds_base=0):
    SPS = 12
    STB = SPS * NT * 1024
    XR = 80
    WFB = XR + 4 * (XDEP + 1)
    NST = nsteps // SPS
    def xload(s):
        b = XR + 4 * (s % (XDEP + 1))
        a(f"buffer_load_dwordx4 v[{b}:{b+3}], v7, s[56:59], s80 offen")
        a("s_add_u32 s80, s80, 1024")
        vm.issue(("x", s))
    def dma(stage, i):
        t, q = divmod(i, SPS // 4)
        a(f"s_add_u32 m0, s10, {lds_base + (stage % 2) * STB + t * SPS * 1024 + q * 4096}")
        a(f"s_add_u32 s12, s{84+t}, {(stage * SPS + 4 * q) * 1024}")
        a(f"buffer_load_dwordx4 v7, s[56:59], s12 offen lds")
        vm.issue(("d", stage))
    PPS = SPS * NT // 4
    def wfrag(s):
        st = s // SPS
        for t in range(NT):
            b = WFB + 4 * NT * (s & 1) + 4 * t
            a(f"ds_read_b128 v[{b}:{b+3}], v7 offset:{lds_base + (st % 2) * STB + t * SPS * 1024 + (s % SPS) * 1024}")
    for i in range(PPS): dma(0, i)
    for s in range(XDEP): xload(s)
    for i in range(PPS): dma(1, i)
    for r in range(16 * NT):
        a(f"v_mov_b32 v{ACC+r}, 0")
    vm.wait(("d", 0))
    a("s_barrier")
    wfrag(0)
    for s in range(nsteps):
        st = s // SPS
        if s + 1 < nsteps:
            if s % SPS == SPS - 1:
                vm.wait(("d", st + 1))
                a("s_waitcnt lgkmcnt(0)")
                a("s_barrier")
            wfrag(s + 1)
        if s + XDEP < nsteps: xload(s + XDEP)
        if st >= 1 and st + 1 < NST and (s % SPS) < PPS:
            dma(st + 1, s % SPS)
        vm.wait(("x", s))
        a(f"s_waitcnt lgkmcnt({NT if s + 1 < nsteps else 0})")
        xb = XR + 4 * (s % (XDEP + 1))
        for t in range(NT):
            wb = WFB + 4 * NT * (s & 1) + 4 * t
            c = ACC + 16 * t
            A, B = (f"v[{wb}:{wb+3}]", f"v[{xb}:{xb+3}]") if modes[t] == 'A' else (f"v[{xb}:{xb+3}]", f"v[{wb}:{wb+3}]")
            a(f"v_mfma_f32_32x32x16_bf16 v[{c}:{c+15}], {A}, {B}, v[{c}:{c+15}]")
    a("s_nop 15\ns_nop 3")

def gemm_loop(a, pre_ops, NT, modes, name, lds_base=0):
    assert NT == 2
    SPS = 6; NST = 6; XD = 5; NSL = 6
    STB = SPS * NT * 1024
    PPS = 3
    XR = 80; WFB = XR + 4 * NSL
    ops = []
    need_x = {}; need_d = {}
    for i in range(PPS): ops.append(("d", 0))
    for s in range(XD): ops.append(("x", s))
    need_d[-1] = len(ops) - 1 - max(j for j, t in enumerate(ops) if t == ("d", 0))
    for st in range(NST):
        for i in range(SPS):
            s = st * SPS + i
            if i < PPS: ops.append(("d", st + 1))
            if i == SPS - 1:
                need_d[st] = len(ops) - 1 - max(j for j, t in enumerate(ops) if t == ("d", st + 1))
            ops.append(("x", s + XD))
            need_x[(st, i)] = len(ops) - 1 - ops.index(("x", s))
    def xload(slot):
        b = XR + 4 * slot
        a(f"buffer_load_dwordx4 v[{b}:{b+3}], v7, s[56:59], s80 offen")
        a("s_add_u32 s80, s80, 1024")
    def dma(i):
        a(f"s_add_u32 m0, s86, {i * 4096}")
        a("s_nop 0")
        a(f"buffer_load_dwordx4 v7, s[56:59], s{93+i} offen lds")
        a(f"s_add_u32 s{93+i}, s{93+i}, {SPS*1024}")
    def wfrag(i, buf):
        for t in range(NT):
            b = WFB + 4 * NT * buf + 4 * t
            a(f"ds_read_b128 v[{b}:{b+3}], v15 offset:{lds_base + t * SPS * 1024 + i * 1024}")
    a(f"""
    s_mov_b32 s93, s84
    s_add_u32 s94, s84, 4096
    s_sub_u32 s95, s85, 2048
    s_cmp_lt_u32 s3, 2
    s_cselect_b32 s94, s94, s95
    s_add_u32 s95, s85, 2048
    s_add_u32 s86, s10, {lds_base}
    v_mov_b32 v15, v7
    """)
    for i in range(PPS): dma(i)
    for s in range(XD): xload(s % NSL)
    for r in range(16 * NT):
        a(f"v_mov_b32 v{ACC+r}, 0")
    a(f"s_xor_b32 s86, s86, {STB}")
    a(f"s_mov_b32 s87, {NST}")
    a(f"s_waitcnt vmcnt({need_d[-1]})")
    a("s_barrier")
    wfrag(0, 0)
    a.label(name)
    for i in range(SPS):
        if i < PPS: dma(i)
        if i == SPS - 1:
            a(f"s_waitcnt vmcnt({min(need_d[st] for st in range(NST))}) lgkmcnt(0)")
            a("s_barrier")
            a(f"v_xor_b32 v15, {STB}, v15")
            a(f"s_xor_b32 s86, s86, {STB}")
            wfrag(0, (i + 1) & 1)
        else:
            wfrag(i + 1, (i + 1) & 1)
        xload((i + XD) % NSL)
        a(f"s_waitcnt vmcnt({min(need_x[(st, i)] for st in range(NST))}) lgkmcnt({NT})")
        xb = XR + 4 * (i % NSL)
        for t in range(NT):
            wb = WFB + 4 * NT * (i & 1) + 4 * t
            c = ACC + 16 * t
            A, B = (f"v[{wb}:{wb+3}]", f"v[{xb}:{xb+3}]") if modes[t] == 'A' else (f"v[{xb}:{xb+3}]", f"v[{wb}:{wb+3}]")
            a(f"v_mfma_f32_32x32x16_bf16 v[{c}:{c+15}], {A}, {B}, v[{c}:{c+15}]")
    a(f"""
    s_sub_u32 s87, s87, 1
    s_cmp_lg_u32 s87, 0
    s_cbranch_scc1 {name}
    s_waitcnt vmcnt(0) lgkmcnt(0)
    s_nop 15
    """)

def gemm_loop12(a, pre_ops, NT, modes, name, lds_base=0):
    SPS = 12; NST = 3; XD = 5; NSL = 6
    STB = SPS * NT * 1024
    PPS = SPS * NT // 4
    XR = 80; WFB = XR + 4 * NSL
    ops = []
    need_x = {}; need_d = {}
    for i in range(PPS): ops.append(("d", 0))
    for s in range(XD): ops.append(("x", s))
    need_d[-1] = len(ops) - 1 - max(j for j, t in enumerate(ops) if t == ("d", 0))
    for st in range(NST):
        for i in range(SPS):
            s = st * SPS + i
            if i < PPS: ops.append(("d", st + 1))
            if i == SPS - 1:
                need_d[st] = len(ops) - 1 - max(j for j, t in enumerate(ops) if t == ("d", st + 1))
            ops.append(("x", s + XD))
            need_x[(st, i)] = len(ops) - 1 - ops.index(("x", s))
    def xload(slot):
        b = XR + 4 * slot
        a(f"buffer_load_dwordx4 v[{b}:{b+3}], v7, s[56:59], s80 offen")
        a("s_add_u32 s80, s80, 1024")
    def dma(i):
        t, q = divmod(i, SPS // 4)
        a(f"s_add_u32 m0, s86, {t * SPS * 1024 + q * 4096}")
        a("s_nop 0")
        a(f"buffer_load_dwordx4 v7, s[56:59], s{84+t} offen lds")
        a(f"s_add_u32 s{84+t}, s{84+t}, 4096")
    def wfrag(i, buf):
        for t in range(NT):
            b = WFB + 4 * NT * buf + 4 * t
            a(f"ds_read_b128 v[{b}:{b+3}], v15 offset:{lds_base + t * SPS * 1024 + i * 1024}")
    a(f"s_add_u32 s86, s10, {lds_base}")
    a("v_mov_b32 v15, v7")
    for i in range(PPS): dma(i)
    for s in range(XD): xload(s % NSL)
    for r in range(16 * NT):
        a(f"v_mov_b32 v{ACC+r}, 0")
    a(f"s_xor_b32 s86, s86, {STB}")
    a(f"s_mov_b32 s87, {NST}")
    a(f"s_waitcnt vmcnt({need_d[-1]})")
    a("s_barrier")
    wfrag(0, 0)
    a.label(name)
    for i in range(SPS):
        if i < PPS: dma(i)
        if i == SPS - 1:
            a(f"s_waitcnt vmcnt({min(need_d[st] for st in range(NST))}) lgkmcnt(0)")
            a("s_barrier")
            a(f"v_xor_b32 v15, {STB}, v15")
            a(f"s_xor_b32 s86, s86, {STB}")
            wfrag(0, (i + 1) & 1)
        else:
            wfrag(i + 1, (i + 1) & 1)
        xload((i + XD) % NSL)
        a(f"s_waitcnt vmcnt({min(need_x[(st, i)] for st in range(NST))}) lgkmcnt({NT})")
        xb = XR + 4 * (i % NSL)
        for t in range(NT):
            wb = WFB + 4 * NT * (i & 1) + 4 * t
            c = ACC + 16 * t
            A, B = (f"v[{wb}:{wb+3}]", f"v[{xb}:{xb+3}]") if modes[t] == 'A' else (f"v[{xb}:{xb+3}]", f"v[{wb}:{wb+3}]")
            a(f"v_mfma_f32_32x32x16_bf16 v[{c}:{c+15}], {A}, {B}, v[{c}:{c+15}]")
    a(f"""
    s_sub_u32 s87, s87, 1
    s_cmp_lg_u32 s87, 0
    s_cbranch_scc1 {name}
    s_waitcnt vmcnt(0) lgkmcnt(0)
    s_nop 15
    """)
```

```python
from common import *
from gemm import *
import math

LOG2E = 1.4426950408889634
QSCALE = LOG2E / math.sqrt(18.0)

CP = 0; CS = 4160
KG = 0; KGW = 8704; KGR = 272
UB = 30640
RV = 47104
TB = 34816
K1_LDS = 40960
KG_LDS = 36352
ZIDX = 700
RVG = 4224
RVG_OFF = 28 << 20
NCONV = 576; NQ = 256; NKV = 16

def cmul(a, dr, di, ar, ai, br, bi, nbi):
    a(f"v_mul_f32 v{dr}, v{ar}, v{br}")
    a(f"v_mul_f32 v{di}, v{ar}, v{bi}")
    a(f"v_fmac_f32 v{dr}, v{ai}, v{nbi}")
    a(f"v_fmac_f32 v{di}, v{ai}, v{br}")

def cexp(a, dr, di, P0, P1, posreg, t):
    a(f"""
    v_mul_f32 v{t}, {posreg}, v{P0}
    v_mul_f32 v{t+1}, {posreg}, v{P1}
    v_exp_f32 v{t}, v{t}
    v_fract_f32 v{t+1}, v{t+1}
    v_cos_f32 v{dr}, v{t+1}
    v_sin_f32 v{di}, v{t+1}
    s_nop 0
    v_mul_f32 v{dr}, v{t}, v{dr}
    v_mul_f32 v{di}, v{t}, v{di}
    """)

def gen_kgen(a):
    srd(a, 56, 46, 0x10000000)
    srd(a, 68, 18, 147456)
    srd(a, 72, 20, 147456)
    srd(a, 76, 22, 147456)
    srd(a, 80, 24, 147456)
    srd(a, 84, 26, 1152)
    a("""
    s_lshl_b32 s4, s2, 1
    v_lshlrev_b32 v4, 1, v2
    s_lshl_b32 s5, s2, 8
    v_mov_b32 v5, s4
    buffer_load_ushort v24, v5, s[84:87], 0 offen
    buffer_load_ushort v16, v4, s[68:71], s5 offen
    buffer_load_ushort v17, v4, s[72:75], s5 offen
    buffer_load_ushort v18, v4, s[76:79], s5 offen
    buffer_load_ushort v19, v4, s[80:83], s5 offen
    buffer_load_ushort v20, v4, s[68:71], s5 offen offset:128
    buffer_load_ushort v21, v4, s[72:75], s5 offen offset:128
    buffer_load_ushort v22, v4, s[76:79], s5 offen offset:128
    buffer_load_ushort v23, v4, s[80:83], s5 offen offset:128
    """)
    a(f"""
    v_mov_b32 v28, 0
    v_mov_b32 v29, 0
    v_mov_b32 v30, 0
    v_mov_b32 v31, 0
    v_lshlrev_b32 v6, 4, v0
    v_cmp_gt_u32 vcc, 64, v0
    s_and_saveexec_b64 s[12:13], vcc
    v_mov_b32 v7, {TB + 2*ZIDX}
    ds_write_b16 v7, v28
    s_mov_b64 exec, s[12:13]
    s_mov_b32 s8, 1
    s_lshl_b32 s8, s8, s3
    v_cvt_f32_u32 v6, s8
    s_nop 0
    v_readfirstlane_b32 s88, v6
    v_mul_f32 v6, 0x41800000, v6
    s_nop 0
    v_readfirstlane_b32 s89, v6
    v_mul_f32 v6, 0x41000000, v6
    s_cmp_eq_u32 s3, 0
    s_cselect_b32 s6, 0, 8
    v_readfirstlane_b32 s90, v6
    s_nop 3
    s_cselect_b32 s90, 0, s90
    s_mul_i32 s91, s3, {KGW}
    v_lshlrev_b32 v8, 2, v2
    v_add_u32 v8, s91, v8
    v_and_b32 v4, 15, v2
    v_lshrrev_b32 v5, 4, v2
    v_mul_u32_u24 v9, {KGR}, v4
    v_lshl_add_u32 v9, v5, 4, v9
    v_add_u32 v9, s91, v9
    v_mov_b32 v40, 0
    v_mov_b32 v41, 0
    v_mov_b32 v42, 0
    v_mov_b32 v43, 0
    s_waitcnt vmcnt(0)
    v_lshlrev_b32 v24, 16, v24
    v_mul_f32 v24, {f32bits(LOG2E)}, v24
    v_exp_f32 v24, v24
    s_nop 0
    v_cvt_pk_bf16_f32 v24, v24, v24
    v_lshlrev_b32 v24, 16, v24
    """)
    for ps in range(2):
        r0 = 16 + 4 * ps
        P0, P1, P2, P3 = 44, 45, 46, 47
        a(f"""
        v_lshlrev_b32 v{r0}, 16, v{r0}
        v_lshlrev_b32 v{r0+1}, 16, v{r0+1}
        v_lshlrev_b32 v{r0+2}, 16, v{r0+2}
        v_lshlrev_b32 v{r0+3}, 16, v{r0+3}
        v_mul_f32 v{r0}, {f32bits(LOG2E)}, v{r0}
        v_exp_f32 v{r0}, v{r0}
        s_nop 0
        v_cvt_pk_bf16_f32 v{r0}, v{r0}, v{r0}
        v_lshlrev_b32 v{r0}, 16, v{r0}
        v_mul_f32 v{r0}, v{r0}, v24
        v_mul_f32 v{P0}, {f32bits(-LOG2E)}, v{r0}
        v_mul_f32 v{r0+1}, v{r0+1}, v24
        v_mul_f32 v{P1}, {f32bits(1.0/(2*math.pi))}, v{r0+1}
        v_mul_f32 v{r0+2}, v{r0+2}, v24
        v_add_f32 v{P2}, v{r0+2}, v{r0+2}
        v_mul_f32 v{r0+3}, v{r0+3}, v24
        v_add_f32 v{P3}, v{r0+3}, v{r0+3}
        """)
        cexp(a, 48, 49, P0, P1, "s88", 60)
        cexp(a, 51, 52, P0, P1, "s89", 60)
        cexp(a, 54, 55, P0, P1, "s90", 60)
        a(f"""
        v_sub_f32 v50, 0, v49
        v_sub_f32 v53, 0, v52
        v_sub_f32 v58, 0, v{P3}
        """)
        cmul(a, 56, 57, 54, 55, P2, P3, 58)
        if ps == 1:
            a("s_waitcnt lgkmcnt(0)")
        a(f"v_mov_b32 v72, 0x00003f80")
        a(f"ds_write_b32 v8, v72 offset:{16*KGR}")
        a("v_cvt_pk_bf16_f32 v73, v56, v57")
        a(f"ds_write_b32 v8, v73 offset:0")
        fprev, gprev = None, (56, 57)
        for j in range(1, 16):
            fc = (64, 65) if j & 1 else (66, 67)
            gc = (68, 69) if j & 1 else (70, 71)
            if j == 1:
                a(f"v_mov_b32 v64, v48\nv_mov_b32 v65, v49")
            else:
                cmul(a, fc[0], fc[1], fprev[0], fprev[1], 48, 49, 50)
            cmul(a, gc[0], gc[1], gprev[0], gprev[1], 51, 52, 53)
            a(f"v_cvt_pk_bf16_f32 v72, v{fc[0]}, -v{fc[1]}")
            a(f"v_cvt_pk_bf16_f32 v73, v{gc[0]}, v{gc[1]}")
            a(f"ds_write_b32 v8, v72 offset:{(16+j)*KGR}")
            a(f"ds_write_b32 v8, v73 offset:{j*KGR}")
            fprev, gprev = fc, gc
        a("s_waitcnt lgkmcnt(0)")
        for st in range(4):
            a(f"ds_read_b128 v[{76+8*st}:{79+8*st}], v9 offset:{64*st}")
            a(f"ds_read_b128 v[{80+8*st}:{83+8*st}], v9 offset:{16*KGR + 64*st}")
        for st in range(4):
            a(f"s_waitcnt lgkmcnt({6-2*st})")
            a(f"v_mfma_f32_16x16x32_bf16 v[40:43], v[{76+8*st}:{79+8*st}], v[{80+8*st}:{83+8*st}], v[40:43]")
    a(f"""
    s_nop 7
    """)
    a(f"""
    s_nop 4
    s_lshl_b32 s7, s3, 7
    s_lshl_b32 s8, s6, 4
    s_add_u32 s7, s7, s8
    v_lshl_add_u32 v9, v5, 6, v4
    v_add_u32 v9, s7, v9
    v_lshlrev_b32 v9, 1, v9
    v_cvt_pk_bf16_f32 v44, v40, v41
    v_cvt_pk_bf16_f32 v45, v42, v43
    s_cmp_eq_u32 s3, 0
    s_cbranch_scc1 K0_TW_ALL
    s_cmp_eq_u32 s3, 3
    s_cbranch_scc0 K0_TW_HALF
    s_mov_b32 exec_lo, 0
    s_mov_b32 exec_hi, 0xffff
    ds_write_b16 v9, v44 offset:{TB}
    K0_TW_HALF:
    s_mov_b32 exec_lo, -1
    s_mov_b32 exec_hi, 0
    K0_TW_ALL:
    ds_write_b16 v9, v44 offset:{TB}
    ds_write_b16_d16_hi v9, v44 offset:{TB+32}
    ds_write_b16 v9, v45 offset:{TB+64}
    ds_write_b16_d16_hi v9, v45 offset:{TB+96}
    s_mov_b64 exec, -1
    s_waitcnt lgkmcnt(0)
    s_barrier
    """)
    def d1(cbase):
        a(f"v_add_u32 v10, {cbase}, v0" if cbase else "v_mov_b32 v10, v0")
        a(f"""
        v_lshlrev_b32 v11, 3, v10
        v_sub_u32 v11, 2048, v11
        """)
        for i in range(8):
            a(f"v_subrev_u32 v{16+i}, {i}, v11" if i else "v_mov_b32 v16, v11")
        for i in range(8):
            a(f"v_cvt_f32_i32 v{24+i}, v{16+i}")
        for p in range(4):
            a(f"v_cvt_pk_bf16_f32 v{32+p}, v{24+2*p}, v{25+2*p}")
        for i in range(8):
            p = i // 2
            if i & 1:
                a(f"v_lshrrev_b32 v{24+i}, 16, v{32+p}")
            else:
                a(f"v_and_b32 v{24+i}, 0xffff, v{32+p}")
            a(f"v_subrev_u32 v{24+i}, 17024, v{24+i}")
        for i in range(8):
            a(f"v_cmp_gt_i32 s[{92+2*(i&3)}:{93+2*(i&3)}], s100, v{16+i}")
            if (i & 3) == 3:
                for k in range(i - 3, i + 1):
                    a(f"v_cndmask_b32 v{24+k}, v{24+k}, v{16+k}, s[{92+2*(k&3)}:{93+2*(k&3)}]")
        if cbase:
            for i in range(8):
                a(f"v_cmp_gt_i32 vcc, 0, v{16+i}")
                a("s_nop 1")
                a(f"v_cndmask_b32 v{24+i}, v{24+i}, v12, vcc")
        for i in range(8):
            a(f"v_lshlrev_b32 v{24+i}, 1, v{24+i}")
        for i in range(8):
            a(f"ds_read_u16 v{16+i}, v{24+i} offset:{TB}")
        a(f"""
        v_lshlrev_b32 v13, 4, v10
        s_waitcnt lgkmcnt(0)
        v_lshl_or_b32 v36, v17, 16, v16
        v_lshl_or_b32 v37, v19, 16, v18
        v_lshl_or_b32 v38, v21, 16, v20
        v_lshl_or_b32 v39, v23, 16, v22
        buffer_store_dwordx4 v[36:39], v13, s[56:59], s101 offen
        """)
    a(f"v_mov_b32 v12, {ZIDX}")
    a(f"s_mul_i32 s101, s2, {RVG}")
    a(f"s_add_u32 s101, s101, {RVG_OFF}")
    a("s_movk_i32 s100, 128")
    d1(0)
    a("""
    v_cmp_gt_u32 vcc, 5, v0
    s_and_saveexec_b64 s[12:13], vcc
    s_cbranch_execz K0_D1_SKIP
    """)
    d1(256)
    a("""
    K0_D1_SKIP:
    s_endpgm
    """)


def gen_k1(a):
    kernel_head(a, "k1_kernel")
    a(f"""
    s_cmp_ge_u32 s2, {NCONV+NQ+NKV}
    s_cbranch_scc1 K1_END
    s_load_dwordx16 s[16:31], s[0:1], 0
    s_load_dwordx16 s[32:47], s[0:1], 64
    v_and_b32 v2, 63, v0
    v_lshrrev_b32 v1, 6, v0
    s_nop 0
    v_readfirstlane_b32 s3, v1
    s_waitcnt lgkmcnt(0)
    s_cmp_ge_u32 s2, {NQ+NKV}
    s_cbranch_scc1 K1_CONV
    s_sub_u32 s2, s2, {NKV}
    s_cmp_lt_i32 s2, 0
    s_cselect_b32 s8, {NQ+NKV}, 0
    s_add_u32 s2, s2, s8
    """)
    srd(a, 56, 46, 0x10000000)
    a(f"""
    v_and_b32 v5, 31, v2
    v_lshrrev_b32 v6, 5, v2
    v_lshlrev_b32 v7, 4, v2
    s_lshl_b32 s4, s2, 2
    s_add_u32 s4, s4, s3
    s_cmp_lt_u32 s2, {NQ}
    s_cbranch_scc0 K1_KV
    s_and_b32 s7, s2, 7
    s_lshr_b32 s8, s2, 3
    s_lshr_b32 s5, s8, 4
    s_lshl_b32 s7, s7, 1
    s_add_u32 s5, s5, s7
    s_lshl_b32 s5, s5, 2
    s_add_u32 s5, s5, s3
    s_and_b32 s6, s8, 15
    s_mul_i32 s80, s5, 36864
    s_add_u32 s80, s80, {XF_OFF}
    s_lshl_b32 s10, s3, 10
    s_mul_i32 s84, s6, {2*36864}
    s_add_u32 s84, s84, {WQF_OFF}
    s_add_u32 s84, s84, s10
    s_add_u32 s85, s84, 36864
    """)
    vm = VM(a)
    gemm_loop(a, 0, 2, ['A', 'A'], 'K1_QL')
    a(f"s_mov_b32 s9, {f32bits(QSCALE)}")
    for c in range(2):
        for r in range(10):
            a(f"v_mul_f32 v{ACC+16*c+r}, s9, v{ACC+16*c+r}")
    a("""
    v_cmp_gt_u32 vcc, 32, v2
    v_mov_b32 v101, 0
    v_mov_b32 v102, 0
    v_mov_b32 v103, 0
    v_mov_b32 v109, 0
    v_mov_b32 v110, 0
    v_mov_b32 v111, 0
    s_lshl_b32 s9, s6, 7
    s_add_u32 s9, s9, s5
    s_lshl_b32 s9, s9, 11
    """)
    for t in range(2):
        c = ACC + 16 * t
        b = 96 + 8 * t
        for p in range(4):
            a(f"v_cvt_pk_bf16_f32 v{b+p}, v{c+2*p}, v{c+2*p+1}")
        a(f"v_cvt_pk_bf16_f32 v{b+4}, v{c+8}, v{c+9}")
        a(f"v_cndmask_b32 v{b+4}, 0, v{b+4}, vcc")
        a(f"s_add_u32 s12, s9, {t*64*2048}")
        a(f"buffer_store_dwordx4 v[{b}:{b+3}], v7, s[56:59], s12 offen")
        a(f"buffer_store_dwordx4 v[{b+4}:{b+7}], v7, s[56:59], s12 offen offset:1024")
    a("s_endpgm")

    a.label("K1_KV")
    a(f"""
    s_sub_u32 s5, s4, {NQ*4}
    s_mul_i32 s80, s5, 36864
    s_add_u32 s80, s80, {XF_OFF}
    s_lshl_b32 s10, s3, 10
    s_add_u32 s84, s10, {WKF_OFF}
    s_add_u32 s85, s10, {WVF_OFF}
    """)
    vm = VM(a)
    gemm_loop(a, 0, 2, ['A', 'B'], 'K1_KL')
    a(f"""
    s_lshr_b32 s9, s5, 3
    s_mul_i32 s9, s9, {CHUNK}
    s_add_u32 s9, s9, {KV_OFF}
    s_and_b32 s10, s5, 7
    s_lshl_b32 s11, s10, 10
    s_add_u32 s11, s11, s9
    """)
    for p in range(4):
        a(f"v_cvt_pk_bf16_f32 v{96+p}, v{ACC+2*p}, v{ACC+2*p+1}")
    a(f"v_cvt_pk_bf16_f32 v100, v{ACC+8}, v{ACC+9}")
    a("buffer_store_dwordx4 v[96:99], v7, s[56:59], s11 offen")
    for p in range(8):
        a(f"v_cvt_pk_bf16_f32 v{104+p}, v{ACC+16+2*p}, v{ACC+16+2*p+1}")
    a(f"""
    v_mov_b32 v10, 0x3f803f80
    v_cmp_eq_u32 vcc, 18, v5
    s_nop 1
    """)
    for p in range(8):
        a(f"v_cndmask_b32 v{104+p}, v{104+p}, v10, vcc")
    a(f"""
    s_mul_i32 s11, s10, {VT}
    s_add_u32 s11, s11, s9
    s_add_u32 s11, s11, {VV_OFF}
    v_mul_u32_u24 v4, 304, v6
    v_lshl_add_u32 v4, v5, 4, v4
    v_cmp_gt_u32 vcc, 19, v5
    s_and_saveexec_b64 s[12:13], vcc
    buffer_store_dwordx4 v[104:107], v4, s[56:59], s11 offen
    buffer_store_dwordx4 v[108:111], v4, s[56:59], s11 offen offset:608
    s_lshl_b32 s11, s10, 7
    s_add_u32 s11, s11, s9
    s_add_u32 s11, s11, {KT_OFF}
    s_mov_b32 exec_lo, -1
    s_mov_b32 exec_hi, 0
    v_lshlrev_b32 v4, 2, v5
    buffer_store_dword v100, v4, s[56:59], s11 offen
    v_cvt_pk_bf16_f32 v120, v{ACC+10}, v{ACC+10}
    v_lshlrev_b32 v120, 16, v120
    v_mul_f32 v120, {f32bits(-LOG2E)}, v120
    v_exp_f32 v120, v120
    s_nop 0
    v_add_f32 v120, 1.0, v120
    v_rcp_f32 v120, v120
    s_nop 0
    v_cvt_pk_bf16_f32 v120, v120, v120
    v_lshlrev_b32 v120, 16, v120
    s_lshl_b32 s11, s5, 7
    s_add_u32 s11, s11, {G_OFF}
    buffer_store_dword v120, v4, s[56:59], s11 offen
    s_endpgm
    """)

    a("""
    K1_END:
    s_endpgm
    """)
    a.label("K1_CONV")
    a(f"""
    s_sub_u32 s2, s2, {NQ+NKV}
    s_mov_b32 s99, 0
    """)
    gen_conv(a)


def gen_conv(a):
    srd(a, 56, 46, 0x10000000)
    a(f"""
    v_lshlrev_b32 v3, 4, v0
    s_lshl_b32 s7, s2, 12
    s_add_u32 s7, s7, {UT_OFF}
    buffer_load_dwordx4 v[112:115], v3, s[56:59], s7 offen
    s_mul_i32 s8, s2, {RVG}
    s_add_u32 s8, s8, {RVG_OFF}
    buffer_load_dwordx4 v[20:23], v3, s[56:59], s8 offen offset:16
    buffer_load_dwordx4 v[16:19], v3, s[56:59], s8 offen
    s_add_u32 s9, s8, 4096
    buffer_load_dwordx4 v[52:55], v3, s[56:59], s9 offen
    buffer_load_dwordx4 v[48:51], v3, s[56:59], s9 offen offset:16
    v_mov_b32 v28, 0
    v_mov_b32 v29, 0
    v_mov_b32 v30, 0
    v_mov_b32 v31, 0
    v_lshlrev_b32 v6, 4, v0
    v_add_u32 v6, s99, v6
    v_cmp_gt_u32 vcc, 155, v0
    s_and_saveexec_b64 s[12:13], vcc
    ds_write_b128 v6, v[28:31] offset:{UB+33*80}
    s_mov_b64 exec, s[12:13]
    v_lshrrev_b32 v6, 2, v0
    v_mul_u32_u24 v6, 80, v6
    v_and_b32 v7, 3, v0
    v_lshl_add_u32 v6, v7, 4, v6
    v_add_u32 v6, s99, v6
    s_waitcnt vmcnt(4)
    ds_write_b128 v6, v[112:115] offset:{UB + 64*80}
    s_waitcnt vmcnt(2)
    """)
    def d2(cbase):
        a(f"v_add_u32 v10, {cbase}, v0" if cbase else "v_mov_b32 v10, v0")
        a("v_lshlrev_b32 v13, 4, v10")
        a("v_add_u32 v13, s99, v13")
        if cbase:
            a("s_waitcnt vmcnt(0)")
            for k in range(4):
                a(f"v_mov_b32 v{16+k}, v{52+k}")
                a(f"v_mov_b32 v{20+k}, v{48+k}")
        for k in range(7):
            a(f"v_mov_b32 v{24+k}, v{17+k}")
        for k in range(7):
            a(f"v_alignbit_b32 v{32+k}, v{17+k}, v{16+k}, 16")
        for k in range(6):
            a(f"v_alignbit_b32 v{40+k}, v{18+k}, v{17+k}, 16")
        for r in range(8):
            if r % 2 == 0:
                st = 4 - r // 2
                base = 16 + st if st % 2 == 0 else 24 + st - 1
            else:
                st = (7 - r) // 2
                base = 32 + st if st % 2 == 0 else 40 + st - 1
            a(f"ds_write_b128 v13, v[{base}:{base+3}] offset:{CP + r*CS}")
    d2(0)
    a("""
    v_cmp_gt_u32 vcc, 4, v0
    s_and_saveexec_b64 s[12:13], vcc
    s_cbranch_execz K2_D2_SKIP
    """)
    d2(256)
    a("""
    K2_D2_SKIP:
    s_mov_b64 exec, -1
    s_waitcnt vmcnt(0) lgkmcnt(0)
    s_barrier
    """)
    a(f"""
    v_and_b32 v4, 31, v2
    v_lshrrev_b32 v5, 5, v2
    v_and_b32 v6, 7, v4
    v_sub_u32 v7, v4, v6
    v_mul_u32_u24 v8, {CS}, v6
    v_lshlrev_b32 v9, 4, v5
    v_add_u32 v8, v8, v9
    v_lshlrev_b32 v7, 1, v7
    v_sub_u32 v8, v8, v7
    s_lshl_b32 s8, s3, 5
    s_sub_u32 s8, {CP + 4096 - 32*126 + 32*127 - 128*31 - 16}, s8
    v_add_u32 v8, s8, v8
    v_add_u32 v8, s99, v8
    s_lshr_b32 s8, s3, 1
    s_mul_i32 s8, s8, 80
    s_sub_u32 s8, {UB + 2*80}, s8
    s_and_b32 s9, s3, 1
    s_xor_b32 s9, s9, 1
    s_lshl_b32 s9, s9, 5
    s_add_u32 s8, s8, s9
    v_mul_u32_u24 v10, 80, v4
    v_add_u32 v10, v10, v9
    v_add_u32 v10, s8, v10
    v_add_u32 v10, s99, v10
    """)
    for r in range(32):
        a(f"v_mov_b32 v{64+r}, 0")
    def rd(i, sl):
        b = 16 + 12 * sl
        a(f"ds_read_b128 v[{b}:{b+3}], v8 offset:{128*(31-i)}")
        a(f"ds_read_b128 v[{b+4}:{b+7}], v10 offset:{(32+62-2*i)*80}")
        if i < 16:
            a(f"ds_read_b128 v[{b+8}:{b+11}], v10 offset:{(62-2*i)*80}")
    cnt = lambda i: 3 if i < 16 else 2
    D = 3
    for i in range(D): rd(i, i % 4)
    for i in range(32):
        if i + D < 32: rd(i + D, (i + D) % 4)
        outn = sum(cnt(k) for k in range(i + 1, min(32, i + D + 1)))
        a(f"s_waitcnt lgkmcnt({outn})")
        b = 16 + 12 * (i % 4)
        a(f"v_mfma_f32_32x32x16_bf16 v[80:95], v[{b}:{b+3}], v[{b+4}:{b+7}], v[80:95]")
        if i < 16:
            a(f"v_mfma_f32_32x32x16_bf16 v[64:79], v[{b}:{b+3}], v[{b+8}:{b+11}], v[64:79]")
    a(f"""
    s_nop 15
    s_barrier
    s_mul_i32 s8, s3, 9216
    v_mul_u32_u24 v8, 144, v4
    v_add_u32 v8, s8, v8
    v_add_u32 v8, v8, v9
    v_add_u32 v8, s99, v8
    """)
    for nt in range(2):
        for g in range(4):
            b = 64 + 16 * nt + 4 * g
            a(f"ds_write_b128 v8, v[{b}:{b+3}] offset:{nt*32*144 + g*32}")
    a(f"""
    s_waitcnt lgkmcnt(0)
    s_barrier
    v_lshrrev_b32 v8, 2, v0
    v_mul_u32_u24 v8, 144, v8
    v_and_b32 v9, 3, v0
    v_lshl_add_u32 v8, v9, 5, v8
    v_add_u32 v8, s99, v8
    """)
    for w in range(4):
        a(f"ds_read_b128 v[{16+8*w}:{19+8*w}], v8 offset:{w*9216}")
        a(f"ds_read_b128 v[{20+8*w}:{23+8*w}], v8 offset:{w*9216+16}")
    a("s_waitcnt lgkmcnt(0)")
    for k in range(8):
        a(f"v_add_f32 v{16+k}, v{16+k}, v{24+k}")
        a(f"v_add_f32 v{32+k}, v{32+k}, v{40+k}")
    for k in range(8):
        a(f"v_add_f32 v{16+k}, v{16+k}, v{32+k}")
    for p in range(4):
        a(f"v_cvt_pk_bf16_f32 v{48+p}, v{16+2*p}, v{17+2*p}")
    a(f"""
    s_lshl_b32 s8, s2, 12
    s_add_u32 s8, s8, {YT_OFF}
    v_lshlrev_b32 v8, 4, v0
    buffer_store_dwordx4 v[48:51], v8, s[56:59], s8 offen
    s_endpgm
    """)
```

```python
import sys, re
sys.path.insert(0,'gen')
import gen
def instrument(t, kname, nxt):
    i = t.index(kname + ":\n"); j = t.index(nxt) if nxt else t.index('.section .rodata')
    k = t[i:j]
    k = k.replace(kname + ":\n", kname + ":\n  s_memrealtime s[96:97]\n  s_mov_b32 s98, s2\n  s_waitcnt lgkmcnt(0)\n", 1)
    end = f"""  s_mov_b64 exec, -1
  s_memrealtime s[92:93]
  s_load_dwordx2 s[94:95], s[0:1], 120
  s_waitcnt lgkmcnt(0)
  s_mov_b32 s4, s94
  s_and_b32 s5, s95, 0xffff
  s_mov_b32 s6, 0x1000000
  s_mov_b32 s7, 0x00020000
  v_mov_b32 v4, s96
  v_mov_b32 v5, s92
  v_lshrrev_b32 v3, 6, v0
  s_lshl_b32 s98, s98, 4
  v_add_u32 v3, s98, v3
  v_lshlrev_b32 v3, 3, v3
  v_add_u32 v3, {12<<20}, v3
  buffer_store_dwordx2 v[4:5], v3, s[4:7], 0 offen
  s_endpgm
"""
    k = k.replace("  s_endpgm\n", end)
    return t[:i] + k + t[j:]
if __name__ == "__main__":
    t = gen.build()
    which = sys.argv[1]
    nxt = {"k0_kernel": ".globl k1_kernel", "k1_kernel": ".globl k2_kernel", "k2_kernel": ".globl k3_kernel", "k3_kernel": None}[which]
    open(sys.argv[2], "w").write(instrument(t, which, nxt))
```
